```python
import torch

def _softmax(x, axis=-1):
    return torch.softmax(x, dim=axis)
def _gelu(x):
    return torch.nn.functional.gelu(x, approximate="tanh")
def _silu(x):
    return torch.nn.functional.silu(x)
def _sigmoid(x):
    return torch.sigmoid(x)
def _layernorm(x, axis=-1, eps=1e-5):
    m = x.mean(dim=axis, keepdim=True)
    v = x.var(dim=axis, keepdim=True, unbiased=False)
    return (x - m) / torch.sqrt(v + eps)
def _scatter_add(tgt, idx, src, axis=0):
    return tgt.clone().index_add_(axis, idx, src)
def _segment_sum(src, seg, n):
    out = torch.zeros((n,) + src.shape[1:], dtype=src.dtype)
    return out.index_add_(0, seg, src)
def _pad(x, pw):
    flat = tuple(v for pair in reversed(pw) for v in pair)
    return torch.nn.functional.pad(x, flat)

kernel_name = 'sequential_preLN__ssm_conv_s4__mixer_s_mlp__prompt'

def setup_inputs():

    _w = (lambda a: (lambda t: t.to(torch.bfloat16) if t.is_floating_point() else t)(torch.as_tensor(a)))
    def _A_setup():
        B, L, D, N = 1, 2048, 512, 128
        A_re = -(lambda _x: torch.exp(torch.as_tensor(_x)))((lambda *s: torch.randn(*s, dtype=torch.bfloat16) * 3.2)(D, N))
        A_im = torch.pi * (lambda *s: torch.randn(*s, dtype=torch.bfloat16) * 0.05)(D, N)
        B_re = (lambda *s: torch.randn(*s, dtype=torch.bfloat16) * 0.1)(D, N)
        B_im = (lambda *s: torch.randn(*s, dtype=torch.bfloat16) * 0.1)(D, N)
        C_re = (lambda *s: torch.randn(*s, dtype=torch.bfloat16) * 0.1)(D, N)
        C_im = (lambda *s: torch.randn(*s, dtype=torch.bfloat16) * 0.1)(D, N)
        log_dt = (lambda *s: torch.randn(*s, dtype=torch.bfloat16) * 0.05)(D) * 0.5 - 4.0
        Dskip = (lambda *s: torch.randn(*s, dtype=torch.bfloat16) * 0.05)(D)
        return {
            "u": _w((lambda *s: torch.randn(*s, dtype=torch.bfloat16) * 0.05)(B, L, D)),
            "A_re": _w(A_re),
            "A_im": _w(A_im),
            "B_re": _w(B_re),
            "B_im": _w(B_im),
            "C_re": _w(C_re),
            "C_im": _w(C_im),
            "log_dt": _w(log_dt),
            "Dskip": _w(Dskip),
        }
    _A_in = _A_setup()

    def _B_setup():
        B, S, D, F = 1, 2048, 512, 1792
        return {
            "x":  _w((lambda *s: torch.randn(*s, dtype=torch.bfloat16) * 0.05)(B, S, D)),
            "w1": _w((lambda *s: torch.randn(*s, dtype=torch.bfloat16) * 3.2)(D, D) * (D ** -0.5)),
            "w2": _w((lambda *s: torch.randn(*s, dtype=torch.bfloat16) * 3.2)(D, D) * (D ** -0.5)),
            "w3": _w((lambda *s: torch.randn(*s, dtype=torch.bfloat16) * 3.2)(D, F) * (D ** -0.5)),
            "w4": _w((lambda *s: torch.randn(*s, dtype=torch.bfloat16) * 1.6)(F, D) * (F ** -0.5)),
        }
    _B_in = _B_setup()

    return {
        "A_u": _A_in["u"],
        "A_A_re": _A_in["A_re"],
        "A_A_im": _A_in["A_im"],
        "A_B_re": _A_in["B_re"],
        "A_B_im": _A_in["B_im"],
        "A_C_re": _A_in["C_re"],
        "A_C_im": _A_in["C_im"],
        "A_log_dt": _A_in["log_dt"],
        "A_Dskip": _A_in["Dskip"],
        "B_x": _B_in["x"],
        "B_w1": _B_in["w1"],
        "B_w2": _B_in["w2"],
        "B_w3": _B_in["w3"],
        "B_w4": _B_in["w4"],
    }

def reference(A_u, A_A_re, A_A_im, A_B_re, A_B_im, A_C_re, A_C_im, A_log_dt, A_Dskip, B_x, B_w1, B_w2, B_w3, B_w4):
    def _A_ref(u, A_re, A_im, B_re, B_im, C_re, C_im, log_dt, Dskip):
        Bsz, L, D = u.shape
        dt = torch.exp(log_dt)[:, None]
        A = A_re + 1j * A_im
        Bc = B_re + 1j * B_im
        Cc = C_re + 1j * C_im
        logdA = dt * A
        dB = dt * Bc
        l = (lambda x, dt: x.to(dt))(torch.arange(L), A_re.dtype)
        P = torch.exp(logdA[:, :, None] * l[None, None, :])
        K = torch.einsum("dn,dnl,dn->dl", Cc, P, dB).real
        L2 = 2 * L
        Kp = _pad(K, ((0, 0), (0, L)))
        up = (lambda x, *d: x.permute(*d))(u, 0, 2, 1)
        up = _pad(up, ((0, 0), (0, 0), (0, L)))
        Kf = (lambda x, axes=(-2,-1): torch.fft.rfft2(x.float(), dim=axes))(Kp[:, None, :], axes=(-2, -1))
        Uf = (lambda x, axes=(-2,-1): torch.fft.rfft2(x.float(), dim=axes))(up[:, :, None, :], axes=(-2, -1))
        Yf = Uf * Kf[None, :, :, :]
        y = (lambda x, s, axes=(-2,-1): torch.fft.irfft2(x, s=s, dim=axes).to(torch.bfloat16))(Yf, (1, L2), axes=(-2, -1))[:, :, 0, :L]
        y = (lambda x, *d: x.permute(*d))(y, 0, 2, 1) + u * Dskip[None, None, :]
        return y

    def _B_ref(x, w1, w2, w3, w4):
        B, S, D = x.shape
        h = _gelu(_layernorm(x, axis=-1) @ w1)
        c = D // 4
        g0 = _pad(h[:, :, 0*c:1*c], ((0, 0), (1, 0), (0, 0)))[:, :S, :]
        g1 = _pad(h[:, :, 1*c:2*c], ((0, 0), (0, 1), (0, 0)))[:, 1:, :]
        g2 = _pad(h[:, :, 2*c:3*c], ((0, 0), (2, 0), (0, 0)))[:, :S, :]
        g3 = _pad(h[:, :, 3*c:   ], ((0, 0), (0, 2), (0, 0)))[:, 2:, :]
        hs = torch.concatenate([g0, g1, g2, g3], axis=-1) @ w2
        x1 = x + hs
        h2 = _gelu(_layernorm(x1, axis=-1) @ w3) @ w4
        return x1 + h2

    x = A_u
    h = x + _A_ref(_layernorm(x, axis=-1), A_A_re, A_A_im, A_B_re, A_B_im, A_C_re, A_C_im, A_log_dt, A_Dskip)
    h2 = h + _B_ref(_layernorm(h, axis=-1), B_w1, B_w2, B_w3, B_w4)
    return h2
```

```python
import re

TRANS = ("v_exp_f32", "v_log_f32", "v_rcp_f32", "v_rsq_f32", "v_sqrt_f32", "v_sin_f32", "v_cos_f32", "v_rcp_iflag_f32")

def _regs(tok):
    tok = tok.strip()
    out = set()
    t = tok.replace("-", "").replace("|", "")
    m = re.match(r"^abs\((.*)\)$", t)
    if m: t = m.group(1)
    m = re.match(r"^([vas])(\d+)$", t)
    if m:
        out.add((m.group(1), int(m.group(2)))); return out
    m = re.match(r"^([vas])\[(\d+):(\d+)\]$", t)
    if m:
        for i in range(int(m.group(2)), int(m.group(3)) + 1): out.add((m.group(1), i))
        return out
    if t in ("vcc", "vcc_lo", "vcc_hi"): out.add(("s", "vcc"))
    if t in ("exec", "exec_lo", "exec_hi"): out.add(("s", "exec"))
    if t == "m0": out.add(("s", "m0"))
    return out

class Ins:
    def __init__(self, text):
        self.text = text
        body = text.split(";")[0].strip()
        self.label = body.endswith(":")
        self.directive = body.startswith(".")
        self.op = ""
        self.w = set(); self.r = set()
        self.kind = "other"
        if not body or self.label or self.directive:
            self.kind = "none"; return
        parts = body.split(None, 1)
        self.op = op = parts[0]
        rest = parts[1] if len(parts) > 1 else ""
        ops = []; depth = 0; cur = ""
        for ch in rest:
            if ch in "[(": depth += 1
            if ch in "])": depth -= 1
            if ch == "," and depth == 0: ops.append(cur); cur = ""
            else: cur += ch
        ops.append(cur)
        mods = ""
        if ops:
            lp = ops[-1].strip().split(None, 1)
            if lp:
                ops[-1] = lp[0]; mods = lp[1] if len(lp) > 1 else ""
        self.mods = mods
        ops = [o.strip() for o in ops if o.strip()]
        self.ops = ops
        R = lambda i: _regs(ops[i]) if i < len(ops) else set()
        allr = lambda a: set().union(*[_regs(o) for o in ops[a:]]) if len(ops) > a else set()
        self.dpp = "_dpp" in op or "quad_perm" in mods or "row_" in mods
        if op.startswith("v_mfma"):
            self.kind = "mfma"; self.w = R(0); self.ra = R(1) | R(2); self.rc = R(3); self.r = self.ra | self.rc
            self.sgemm = op.endswith("_f32") and ("x4_f32" in op or "x2_f32" in op)
            if "16x16x32" in op: self.passes = 4
            elif "32x32x16" in op: self.passes = 8
            elif "16x16x4_f32" in op: self.passes = 8
            elif "32x32x2_f32" in op: self.passes = 16
            else: raise ValueError(op)
        elif op.startswith("v_"):
            self.kind = "valu"
            if op.startswith("v_cmp"):
                self.w = R(0); self.r = allr(1)
                if op.startswith("v_cmpx"): self.w |= {("s", "exec")}
            elif op.startswith("v_permlane") and "swap" in op:
                self.w = R(0) | R(1); self.r = R(0) | R(1)
            elif "_co_" in op:
                self.w = R(0) | R(1); self.r = allr(2)
            else:
                self.w = R(0); self.r = allr(1)
                if op.startswith(("v_fmac", "v_dot2c", "v_mac", "v_pk_fmac")) or self.dpp: self.r |= R(0)
                if op.startswith("v_cndmask") and len(ops) == 3: self.r |= {("s", "vcc")}
            self.trans = op.split("_e")[0] in TRANS or op in TRANS
        elif op.startswith("ds_"):
            self.kind = "ds"
            if op.startswith(("ds_read", "ds_bpermute", "ds_permute", "ds_swizzle")) or "_rtn" in op:
                self.w = R(0); self.r = allr(1)
            else: self.r = allr(0)
        elif op.startswith(("buffer_", "global_", "flat_")):
            self.kind = "vmem"
            self.lds = (" lds" in (" " + mods)) or "load_lds" in op
            if "load" in op and not self.lds:
                self.w = R(0); self.r = allr(1)
            elif "atomic" in op and "sc0" in mods:
                self.w = R(0); self.r = allr(1)
            else:
                self.r = allr(0)
            if self.lds: self.r |= {("s", "m0")}
            self.widestore = "store" in op and ("x3" in op or "x4" in op)
            if self.widestore:
                self.sdata = R(0) if op.startswith("buffer_") else R(1)
        elif op.startswith("s_"):
            self.kind = "salu"
            if op.startswith(("s_cmp", "s_waitcnt", "s_barrier", "s_branch", "s_cbranch", "s_nop", "s_endpgm", "s_sleep", "s_setprio")):
                self.r = allr(0)
            else:
                self.w = R(0); self.r = allr(1)
                if "saveexec" in op: self.w |= {("s", "exec")}
        self.states = 1
        if op == "s_nop": self.states = int(ops[0], 0) + 1

def need(p, c):
    n = 0
    vw = {x for x in p.w if x[0] in "va"}
    sw = {x for x in p.w if x[0] == "s"}
    if p.kind == "valu":
        if c.kind == "mfma" and vw & c.r: n = max(n, 2)
        if c.kind == "mfma" and ("s", "exec") in sw: n = max(n, 4)
        if c.kind == "valu":
            if p.trans and not c.trans and vw & c.r: n = max(n, 1)
            if c.dpp and vw & c.r: n = max(n, 2)
            if c.op.startswith(("v_readlane", "v_readfirstlane")) and vw & c.r: n = max(n, 1)
            if c.op.startswith("v_permlane") and vw & c.r: n = max(n, 2)
            if sw & c.r:
                n = max(n, 4 if c.op.startswith(("v_readlane", "v_writelane")) else 2)
        if c.kind == "vmem" and sw & c.r: n = max(n, 5)
        if p.op.startswith("v_dot") and (vw & (c.r | c.w)) and c.kind in ("valu", "vmem", "ds", "mfma"):
            if c.op != p.op: n = max(n, 3)
    if p.kind == "mfma":
        big = {2: 5, 4: 8, 8: 12, 16: 20}[p.passes] if not p.sgemm else {2: 4, 4: 6, 8: 10, 16: 18}[p.passes]
        if c.kind == "mfma":
            if p.w & c.ra: n = max(n, big)
            if p.w & c.rc and not (p.w == c.rc and p.passes == c.passes and p.sgemm == c.sgemm):
                n = max(n, {2: 4, 4: 6, 8: 10, 16: 18}[p.passes])
        elif c.kind in ("valu", "vmem", "ds"):
            if p.w & (c.r | c.w): n = max(n, big)
        if c.kind == "valu" and not p.sgemm and p.rc & c.w: n = max(n, {2: 1, 4: 3, 8: 7, 16: 15}[p.passes])
    if p.kind == "vmem" and getattr(p, "widestore", False):
        if p.sdata & c.w: n = max(n, 2 if c.kind == "valu" else 1)
    if p.kind == "salu" and ("s", "m0") in p.w and c.kind == "vmem" and getattr(c, "lds", False): n = max(n, 1)
    return n

def fix_hazards(lines):
    out = []; hist = []
    for t in lines:
        ins = Ins(t)
        if ins.kind == "none":
            out.append(t); continue
        dist = 0; req = 0
        for p in reversed(hist):
            k = need(p, ins)
            if k > dist: req = max(req, k - dist)
            dist += p.states
            if dist > 24: break
        while req > 0:
            k = min(req, 16)
            nop = Ins(f"s_nop {k - 1}")
            out.append(f"    s_nop {k - 1}"); hist.append(nop); req -= k
        out.append(t); hist.append(ins)
        if len(hist) > 64: hist = hist[-40:]
    return out

class Asm:
    def __init__(self): self.lines = []
    def __call__(self, s):
        for ln in s.strip("\n").split("\n"):
            ln = ln.strip()
            if not ln: continue
            self.lines.append(ln if (ln.endswith(":") or ln.startswith(".")) else "    " + ln)
    def label(self, l): self.lines.append(l + ":")
```

```python
import sys, struct
from asmlib import Asm
import layout as LY
def f2u(f): return struct.unpack("<I", struct.pack("<f", f))[0]
def hx(f): return "0x%08x" % f2u(f)
def add64(a, d, s, imm):
    a(f"s_add_u32 s{d}, s{s}, {imm}\ns_addc_u32 s{d+1}, s{s+1}, 0")
def rnd_bf16(a, d, s):
    a(f"v_cvt_pk_bf16_f32 v{d}, v{s}, v{s}\nv_lshlrev_b32 v{d}, 16, v{d}")

def gen_k2(kernels):
    a = Asm()
    USTR = 4288
    UC = 20480
    RED = UC + 16 * USTR
    LDS = RED + 16384
    UB = LY.UROW * 2
    a(f"""
    s_cmp_ge_u32 s2, 256
    s_cbranch_scc1 K2_END
    s_load_dwordx2 s[16:17], s[0:1], 64
    s_load_dwordx2 s[32:33], s[0:1], 128
    v_lshrrev_b32 v1, 6, v0
    v_readfirstlane_b32 s8, v1
    v_and_b32 v2, 63, v0
    v_lshlrev_b32 v3, 4, v2
    s_lshl_b32 s3, s2, 2
    s_waitcnt lgkmcnt(0)
    s_load_dword s15, s[16:17], s3
    """)
    add64(a, 36, 32, LY.UT); add64(a, 38, 32, LY.XT); add64(a, 40, 32, LY.KH); add64(a, 44, 32, LY.HT)
    a(f"""
    s_mul_i32 s3, s2, 20480
    s_mul_i32 s4, s8, 5120
    s_add_u32 s3, s3, s4
    v_add_u32 v3, s3, v3
    """)
    for i in range(5):
        a(f"""
        s_add_u32 s5, s4, {1024*i}
        s_mov_b32 m0, s5
        v_add_u32 v4, {1024*i}, v3
        global_load_lds_dwordx4 v4, s[40:41]
        """)
    a(f"""
    v_lshrrev_b32 v4, 7, v0
    v_and_b32 v5, 127, v0
    s_lshl_b32 s3, s2, 1
    v_add_u32 v6, s3, v4
    v_mul_u32_u24 v6, {UB}, v6
    v_lshl_add_u32 v6, v5, 4, v6
    v_mul_u32_u24 v7, {8*USTR}, v4
    v_lshl_add_u32 v7, v5, 4, v7
    v_add_u32 v7, {UC}, v7
    """)
    for it in range(2):
        a(f"global_load_dwordx4 v[{64+8*it}:{67+8*it}], v6, s[36:37] offset:{2048*it}")
        a(f"global_load_dwordx4 v[{68+8*it}:{71+8*it}], v6, s[36:37] offset:{2048*it+16}")
    a(f"""
    v_add_u32 v8, 0x1000, v6
    v_cmp_gt_u32 vcc, 8, v5
    s_and_saveexec_b64 s[42:43], vcc
    global_load_dwordx4 v[80:83], v8, s[36:37]
    global_load_dwordx4 v[84:87], v8, s[36:37] offset:16
    s_mov_b64 exec, s[42:43]
    """)
    a(f"""
    v_and_b32 v9, 15, v2
    v_lshrrev_b32 v10, 4, v2
    s_lshr_b32 s9, s8, 1
    s_and_b32 s10, s8, 1
    s_lshl_b32 s3, s2, 1
    s_add_u32 s3, s3, s9
    s_lshl_b32 s3, s3, 12
    s_lshl_b32 s4, s10, 11
    s_add_u32 s3, s3, s4
    v_lshlrev_b32 v11, 5, v9
    v_lshl_add_u32 v11, v10, 3, v11
    v_add_u32 v12, s3, v11
    """)
    for i in range(4):
        a(f"global_load_dwordx2 v[{16+2*i}:{17+2*i}], v12, s[38:39] offset:{512*i}")
    a("s_waitcnt vmcnt(4)")
    for it in range(3):
        b = 64 + 8 * it
        if it == 2:
            a("v_cmp_gt_u32 vcc, 8, v5\ns_and_saveexec_b64 s[42:43], vcc")
        off0 = 2048 * it
        for cc in range(8):
            e = cc >> 1
            if cc & 1 == 0:
                if e % 2 == 0:
                    a(f"ds_write_b128 v7, v[{b+e}:{b+e+3}] offset:{cc*USTR + off0}")
                else:
                    for q in range(4): a(f"v_mov_b32 v{24+q}, v{b+e+q}")
                    a(f"ds_write_b128 v7, v[24:27] offset:{cc*USTR + off0}")
            else:
                t = 28 if (cc & 2) else 88
                for q in range(4): a(f"v_alignbit_b32 v{t+q}, v{b+e+q+1}, v{b+e+q}, 16")
                a(f"ds_write_b128 v7, v[{t}:{t+3}] offset:{cc*USTR + off0}")
        if it == 2: a("s_mov_b64 exec, s[42:43]")
    a(f"""
    v_and_b32 v13, 7, v9
    v_mul_u32_u24 v13, {USTR}, v13
    v_and_b32 v14, 8, v9
    v_lshl_add_u32 v14, v10, 3, v14
    v_lshl_add_u32 v13, v14, 1, v13
    s_mul_i32 s4, s9, {8*USTR}
    s_add_u32 s4, s4, {UC}
    v_add_u32 v13, s4, v13
    v_lshlrev_b32 v14, 5, v9
    v_sub_u32 v14, 480, v14
    v_lshl_add_u32 v14, v10, 4, v14
    s_mul_i32 s5, s9, 10240
    v_add_u32 v14, s5, v14
    v_add_u32 v15, s4, v11
    s_waitcnt vmcnt(0) lgkmcnt(0)
    s_barrier
    """)
    for r in range(32): a(f"v_accvgpr_write_b32 a{r}, 0")
    def SQ(d0):
        if d0 == 0: return list(range(0, 8)), list(range(0, 8))
        if d0 == 32: return list(range(0, 9)), list(range(-1, 8))
        return list(range(1, 9)), list(range(-1, 7))
    def bufregs(bi):
        base = 32 + 108 * bi
        U = {s: base + 4 * s for s in range(9)}
        KHr = {q: base + 36 + 4 * (q + 1) for q in range(-1, 8)}
        KLr = {q: base + 72 + 4 * (q + 1) for q in range(-1, 8)}
        return U, KHr, KLr
    def loads(d0, bi):
        S, Q = SQ(d0); U, KHr, KLr = bufregs(bi)
        L = []
        for k in range(9):
            if k < len(S):
                s = S[k]; L.append(f"ds_read_b128 v[{U[s]}:{U[s]+3}], v13 offset:{512*s - 2*d0 + 64}")
            if k < len(Q):
                q = Q[k]; o = 2 * (LY.KOFF - 240 - 256 * q - d0)
                L.append(f"ds_read_b128 v[{KHr[q]}:{KHr[q]+3}], v14 offset:{o}")
                L.append(f"ds_read_b128 v[{KLr[q]}:{KLr[q]+3}], v14 offset:{o + 5120}")
        return L
    def mfmas(d0, bi):
        S, Q = SQ(d0); U, KHr, KLr = bufregs(bi)
        M = []
        for s in S:
            for q in Q:
                t = s + q
                if 0 <= t <= 7:
                    M.append((t, f"v_mfma_f32_16x16x32_bf16 a[{4*t}:{4*t+3}], v[{U[s]}:{U[s]+3}], v[{KHr[q]}:{KHr[q]+3}], a[{4*t}:{4*t+3}]"))
                    M.append((t, f"v_mfma_f32_16x16x32_bf16 a[{4*t}:{4*t+3}], v[{U[s]}:{U[s]+3}], v[{KLr[q]}:{KLr[q]+3}], a[{4*t}:{4*t+3}]"))
        return [m for _, m in M]
    a("s_cmp_eq_u32 s10, 1\ns_cbranch_scc1 K2_H1")
    for half in range(2):
        if half == 1: a("K2_H1:")
        ds = [128 * half + 32 * i for i in range(4)]
        for ln in loads(ds[0], 0): a(ln)
        for i, d0 in enumerate(ds):
            a("s_waitcnt lgkmcnt(0)")
            M = mfmas(d0, i & 1)
            Lx = loads(ds[i + 1], (i + 1) & 1) if i < 3 else []
            for k, m in enumerate(M):
                a(m)
                if k < len(Lx): a(Lx[k])
        keep = 4 * half; send = 4 * (1 - half)
        a(f"""
        s_lshl_b32 s4, s8, 12
        s_xor_b32 s5, s8, 1
        s_lshl_b32 s5, s5, 12
        s_add_u32 s4, s4, {RED}
        s_add_u32 s5, s5, {RED}
        v_lshlrev_b32 v3, 4, v2
        v_add_u32 v4, s4, v3
        v_add_u32 v5, s5, v3
        """)
        for r in range(16): a(f"v_accvgpr_read_b32 v{32+r}, a{4*send + r}")
        for i in range(4): a(f"ds_write_b128 v4, v[{32+4*i}:{35+4*i}] offset:{1024*i}")
        for r in range(16): a(f"v_accvgpr_read_b32 v{48+r}, a{4*keep + r}")
        for i in range(4): a(f"ds_read_b64 v[{80+2*i}:{81+2*i}], v15 offset:{512*(keep+i) + 64}")
        a("s_waitcnt lgkmcnt(0)\ns_barrier")
        for i in range(4): a(f"ds_read_b128 v[{64+4*i}:{67+4*i}], v5 offset:{1024*i}")
        a(f"""
        s_lshl_b32 s6, s15, 16
        s_and_b32 s7, s15, 0xffff0000
        s_cmp_eq_u32 s9, 0
        s_cselect_b32 s6, s6, s7
        s_waitcnt lgkmcnt(0)
        """)
        for i in range(4):
            for r in range(4):
                y = 48 + 4 * i + r
                a(f"v_add_f32 v{y}, v{y}, v{64+4*i+r}")
                rnd_bf16(a, y, y)
                usrc = 80 + 2 * i + (r >> 1); xsrc = 16 + 2 * i + (r >> 1)
                if r & 1:
                    a(f"v_and_b32 v90, 0xffff0000, v{usrc}\nv_and_b32 v91, 0xffff0000, v{xsrc}")
                else:
                    a(f"v_lshlrev_b32 v90, 16, v{usrc}\nv_lshlrev_b32 v91, 16, v{xsrc}")
                a("v_mul_f32 v90, s6, v90")
                rnd_bf16(a, 90, 90)
                a(f"v_add_f32 v{y}, v{y}, v90")
                rnd_bf16(a, y, y)
                a(f"v_add_f32 v{y}, v{y}, v91")
            a(f"v_cvt_pk_bf16_f32 v{92+2*i}, v{48+4*i}, v{49+4*i}")
            a(f"v_cvt_pk_bf16_f32 v{93+2*i}, v{50+4*i}, v{51+4*i}")
        for i in range(4):
            a(f"global_store_dwordx2 v12, v[{92+2*i}:{93+2*i}], s[44:45] offset:{512*i}")
        a("s_endpgm")
    a("K2_END:\ns_endpgm")
    kernels.append(("k2_kernel", 256, 256, LDS, a.lines, 248, 48, 32))

def gen_all(kernels):
    gen_k2(kernels)
```

```python
import sys, struct
from asmlib import Asm
import layout as LY
from gen2 import f2u, hx, add64, rnd_bf16
L2E = 1.4426950408889634
GK0 = -2 * L2E * 0.7978845608028654
GK1 = GK0 * 0.044715

def srd(a, d, base, off, nbytes):
    a(f"""
    s_add_u32 s{d}, s{base}, {off}
    s_addc_u32 s{d+1}, s{base+1}, 0
    s_mov_b32 s{d+2}, {nbytes}
    s_mov_b32 s{d+3}, 0x00020000
    """)

def lane_consts(a):
    a("""
    v_lshrrev_b32 v1, 6, v0
    v_readfirstlane_b32 s8, v1
    v_and_b32 v2, 63, v0
    v_and_b32 v9, 15, v0
    v_bfe_u32 v10, v0, 4, 2
    """)

def dma_voff128(a, vd, ld, vt):
    a(f"""
    v_lshrrev_b32 v{vd}, 3, v2
    v_bfe_u32 v{vt}, v2, 4, 1
    v_lshlrev_b32 v{vt}, 1, v{vt}
    s_and_b32 s3, s8, 1
    s_lshl_b32 s3, s3, 2
    v_or_b32 v{vt}, s3, v{vt}
    v_and_b32 v1, 7, v2
    v_xor_b32 v{vt}, v1, v{vt}
    v_mul_u32_u24 v{vd}, {ld}, v{vd}
    v_lshl_add_u32 v{vd}, v{vt}, 4, v{vd}
    """)

def dma_tile(a, voff, srdr, ninstr_per_wave, rows_per_instr, ld, ldsbase, sso, first=0, soff0=None):
    a(f"""
    s_mul_i32 s{sso}, s8, {rows_per_instr*ld}
    s_lshl_b32 s{sso+1}, s8, 10
    """)
    if soff0 is not None: a(f"s_add_u32 s{sso}, s{sso}, s{soff0}")
    if first: a(f"s_add_u32 s{sso}, s{sso}, {4*first*rows_per_instr*ld}")
    a(f"s_add_u32 s{sso+1}, s{sso+1}, {ldsbase}")
    for j in range(ninstr_per_wave):
        a(f"s_mov_b32 m0, s{sso+1}")
        a(f"buffer_load_dwordx4 v{voff}, s[{srdr}:{srdr+3}], s{sso} offen lds")
        if j < ninstr_per_wave - 1:
            a(f"s_add_u32 s{sso}, s{sso}, {4*rows_per_instr*ld}\ns_add_u32 s{sso+1}, s{sso+1}, 4096")

def tr_base128(a, vd, chunk2_expr_imm, ldsbase, vt1, vt2, wave_chunk=False):
    a(f"""
    v_bfe_u32 v{vt1}, v9, 3, 1
    v_lshlrev_b32 v{vt1}, 1, v{vt1}
    v_and_b32 v{vt2}, 1, v10
    v_lshl_or_b32 v{vt1}, v{vt2}, 2, v{vt1}
    v_bfe_u32 v{vt2}, v9, 1, 1
    """)
    if wave_chunk:
        a(f"s_lshl_b32 s3, s8, 1\nv_add_u32 v{vt2}, s3, v{vt2}")
    else:
        a(f"v_add_u32 v{vt2}, {chunk2_expr_imm}, v{vt2}")
    a(f"""
    v_xor_b32 v{vt1}, v{vt1}, v{vt2}
    v_lshlrev_b32 v{vt1}, 4, v{vt1}
    v_and_b32 v{vt2}, 1, v9
    v_lshl_add_u32 v{vt1}, v{vt2}, 3, v{vt1}
    v_lshrrev_b32 v{vt2}, 2, v9
    v_lshl_add_u32 v{vt2}, v10, 3, v{vt2}
    v_lshl_add_u32 v{vd}, v{vt2}, 7, v{vt1}
    v_add_u32 v{vd}, {ldsbase}, v{vd}
    """)

def xor_reduce(a, r, t):
    a(f"""
    v_mov_b32 v{t}, v{r}
    v_permlane32_swap_b32 v{r}, v{t}
    v_add_f32 v{r}, v{r}, v{t}
    v_mov_b32 v{t}, v{r}
    v_permlane16_swap_b32 v{r}, v{t}
    v_add_f32 v{r}, v{r}, v{t}
    """)

def layernorm_frag(a, src, dst, T):
    a(f"v_mov_b32 v{T}, 0\nv_mov_b32 v{T+1}, 0\nv_mov_b32 v{T+2}, 0\nv_mov_b32 v{T+3}, 0")
    for i in range(64):
        a(f"v_dot2_f32_bf16 v{T+(i&1)}, v{src+i}, s20, v{T+(i&1)}")
        a(f"v_dot2_f32_bf16 v{T+2+(i&1)}, v{src+i}, v{src+i}, v{T+2+(i&1)}")
    a(f"v_add_f32 v{T}, v{T}, v{T+1}\nv_add_f32 v{T+2}, v{T+2}, v{T+3}")
    xor_reduce(a, T, T + 1); xor_reduce(a, T + 2, T + 3)
    a(f"""
    v_mul_f32 v{T}, s21, v{T}
    v_mul_f32 v{T+2}, s21, v{T+2}
    v_fma_f32 v{T+2}, -v{T}, v{T}, v{T+2}
    v_max_f32 v{T+2}, 0, v{T+2}
    """)
    rnd_bf16(a, T + 2, T + 2)
    a(f"v_add_f32 v{T+2}, s22, v{T+2}")
    rnd_bf16(a, T + 2, T + 2)
    a(f"v_sqrt_f32 v{T+2}, v{T+2}")
    rnd_bf16(a, T + 2, T + 2)
    a(f"v_rcp_f32 v{T+2}, v{T+2}")
    rnd_bf16(a, T, T)
    a(f"""
    v_sub_f32 v{T}, 0, v{T}
    v_mov_b32 v{T+3}, v{T+2}
    v_mov_b32 v{T+1}, v{T}
    """)
    for i in range(64):
        t = T + 4 + 4 * (i & 1)
        a(f"""
        v_lshlrev_b32 v{t}, 16, v{src+i}
        v_and_b32 v{t+1}, s23, v{src+i}
        v_pk_add_f32 v[{t}:{t+1}], v[{t}:{t+1}], v[{T}:{T+1}]
        v_cvt_pk_bf16_f32 v{t+2}, v{t}, v{t+1}
        v_lshlrev_b32 v{t}, 16, v{t+2}
        v_and_b32 v{t+1}, s23, v{t+2}
        v_pk_mul_f32 v[{t}:{t+1}], v[{t}:{t+1}], v[{T+2}:{T+3}]
        v_cvt_pk_bf16_f32 v{dst+i}, v{t}, v{t+1}
        """)

def ln_consts(a):
    a(f"""
    s_mov_b32 s20, 0x3f803f80
    s_mov_b32 s21, {hx(1.0/512)}
    s_mov_b32 s22, {hx(1e-5)}
    s_mov_b32 s23, 0xffff0000
    s_mov_b32 s24, {hx(GK0)}
    s_mov_b32 s25, {hx(GK1)}
    """)

def gelu(a, x, t):
    rnd_bf16(a, x, x)
    a(f"""
    v_mul_f32 v{t}, v{x}, v{x}
    v_mov_b32 v{t+1}, s24
    v_fmac_f32 v{t+1}, s25, v{t}
    v_mul_f32 v{t}, v{t+1}, v{x}
    v_exp_f32 v{t}, v{t}
    v_add_f32 v{t}, 1.0, v{t}
    v_rcp_f32 v{t}, v{t}
    v_mul_f32 v{x}, v{x}, v{t}
    """)

def tile_map_32x8(a):
    a("""
    s_and_b32 s4, s2, 7
    s_lshl_b32 s4, s4, 2
    s_lshr_b32 s5, s2, 6
    s_add_u32 s4, s4, s5
    s_bfe_u32 s5, s2, 0x30003
    """)

def mfma_loop_64(a, nsteps, act, wb, wf, acc, soff=0):
    def rd(s):
        b = wf + 16 * (s & 1)
        for c in range(4):
            for h in range(2):
                a(f"ds_read_b64_tr_b16 v[{b+4*c+2*h}:{b+4*c+2*h+1}], v{wb+c} offset:{soff + (32*s+4*h)*128}")
    rd(0)
    for s in range(nsteps):
        if s + 1 < nsteps:
            rd(s + 1); a("s_waitcnt lgkmcnt(8)")
        else:
            a("s_waitcnt lgkmcnt(0)")
        b = wf + 16 * (s & 1)
        for c in range(4):
            a(f"v_mfma_f32_16x16x32_bf16 v[{acc+4*c}:{acc+4*c+3}], v[{b+4*c}:{b+4*c+3}], v[{act+4*s}:{act+4*s+3}], v[{acc+4*c}:{acc+4*c+3}]")

def gen_k3(kernels):
    a = Asm()
    HTL, WL = 0, 65536
    a("""
    s_cmp_ge_u32 s2, 256
    s_cbranch_scc1 K3_END
    s_load_dwordx2 s[16:17], s[0:1], 80
    s_load_dwordx2 s[32:33], s[0:1], 128
    """)
    lane_consts(a); tile_map_32x8(a); ln_consts(a)
    a("s_waitcnt lgkmcnt(0)")
    srd(a, 36, 32, LY.HT, 512 * 4096)
    srd(a, 40, 16, 0, 512 * 1024)
    add64(a, 44, 32, LY.H); add64(a, 46, 32, LY.XB); add64(a, 48, 32, LY.HM)
    dma_voff128(a, 3, 4096, 5)
    dma_voff128(a, 4, 1024, 5)
    a("s_lshl_b32 s6, s4, 7\ns_lshl_b32 s7, s5, 7")
    dma_tile(a, 3, 36, 16, 8, 4096, HTL, 26, soff0=6)
    dma_tile(a, 4, 40, 16, 8, 1024, WL, 26, soff0=7)
    tr_base128(a, 11, 0, HTL, 5, 6, wave_chunk=True)
    for c in range(4): tr_base128(a, 12 + c, 2 * c, WL, 5, 6)
    a("""
    s_lshl_b32 s6, s4, 6
    s_lshl_b32 s7, s8, 4
    s_add_u32 s6, s6, s7
    v_add_u32 v7, s6, v9
    v_lshlrev_b32 v7, 10, v7
    v_lshl_add_u32 v8, v10, 4, v7
    s_lshl_b32 s7, s5, 7
    v_lshl_add_u32 v7, v10, 3, v7
    v_add_u32 v7, s7, v7
    s_waitcnt vmcnt(16)
    s_barrier
    """)
    HV, XBR, T, ACC, WF = 32, 96, 160, 176, 192
    for s in range(16):
        for h in range(2):
            a(f"ds_read_b64_tr_b16 v[{HV+4*s+2*h}:{HV+4*s+2*h+1}], v11 offset:{(32*s+4*h)*128}")
    a("s_waitcnt lgkmcnt(0)")
    layernorm_frag(a, HV, XBR, T)
    for c in range(8):
        a(f"s_cmp_lg_u32 s5, {c}\ns_cbranch_scc1 K3_S{c}")
        for s in (2 * c, 2 * c + 1):
            a(f"global_store_dwordx4 v8, v[{HV+4*s}:{HV+4*s+3}], s[44:45] offset:{64*s}")
            a(f"global_store_dwordx4 v8, v[{XBR+4*s}:{XBR+4*s+3}], s[46:47] offset:{64*s}")
        a(f"K3_S{c}:")
    a("s_nop 1")
    layernorm_frag(a, XBR, HV, T)
    for r in range(16): a(f"v_mov_b32 v{ACC+r}, 0")
    a("s_waitcnt vmcnt(4)\ns_barrier")
    mfma_loop_64(a, 16, HV, 12, WF, ACC)
    for c in range(4):
        for r in range(4): gelu(a, ACC + 4 * c + r, T + 2 * (r & 1))
        a(f"v_cvt_pk_bf16_f32 v{WF+2*c}, v{ACC+4*c}, v{ACC+4*c+1}")
        a(f"v_cvt_pk_bf16_f32 v{WF+2*c+1}, v{ACC+4*c+2}, v{ACC+4*c+3}")
        a(f"global_store_dwordx2 v7, v[{WF+2*c}:{WF+2*c+1}], s[48:49] offset:{32*c}")
    a("K3_END:\ns_endpgm")
    kernels.append(("k3_kernel", 256, 256, 131072, a.lines, 224, 56))

def gen_k4(kernels):
    a = Asm()
    WL = 0
    a("""
    s_cmp_ge_u32 s2, 256
    s_cbranch_scc1 K4_END
    s_load_dwordx2 s[16:17], s[0:1], 88
    s_load_dwordx2 s[32:33], s[0:1], 128
    """)
    lane_consts(a); tile_map_32x8(a)
    a("s_waitcnt lgkmcnt(0)")
    srd(a, 36, 32, LY.HM, 2048 * 1024)
    srd(a, 40, 16, 0, 512 * 1024)
    add64(a, 46, 32, LY.XB); add64(a, 48, 32, LY.X1)
    dma_voff128(a, 4, 1024, 5)
    a("s_lshl_b32 s7, s5, 7")
    dma_tile(a, 4, 40, 16, 8, 1024, WL, 26, soff0=7)
    a("""
    s_lshl_b32 s6, s4, 6
    s_lshl_b32 s7, s8, 4
    s_add_u32 s6, s6, s7
    v_add_u32 v7, s6, v9
    v_lshlrev_b32 v7, 10, v7
    v_lshl_add_u32 v8, v10, 4, v7
    s_lshl_b32 s7, s5, 7
    v_lshl_add_u32 v7, v10, 3, v7
    v_add_u32 v7, s7, v7
    v_subrev_u32 v16, 0x400, v8
    v_add_u32 v17, 0x400, v8
    v_subrev_u32 v18, 0x800, v8
    v_add_u32 v19, 0x800, v8
    """)
    AF, ACC, WF, XR = 32, 96, 112, 144
    for s in range(16):
        a(f"buffer_load_dwordx4 v[{AF+4*s}:{AF+4*s+3}], v{16+(s>>2)}, s[36:39], 0 offen offset:{64*s}")
    for c in range(4):
        a(f"global_load_dwordx2 v[{XR+2*c}:{XR+2*c+1}], v7, s[46:47] offset:{32*c}")
    for c in range(4): tr_base128(a, 12 + c, 2 * c, WL, 5, 6)
    for r in range(16): a(f"v_mov_b32 v{ACC+r}, 0")
    a("s_mov_b32 s23, 0xffff0000\ns_waitcnt vmcnt(4)\ns_barrier")
    mfma_loop_64(a, 16, AF, 12, WF, ACC)
    a("s_waitcnt vmcnt(0)")
    for c in range(4):
        for r in range(4):
            x = ACC + 4 * c + r
            rnd_bf16(a, x, x)
            src = XR + 2 * c + (r >> 1)
            if r & 1: a(f"v_and_b32 v20, s23, v{src}")
            else: a(f"v_lshlrev_b32 v20, 16, v{src}")
            a(f"v_add_f32 v{x}, v{x}, v20")
        a(f"v_cvt_pk_bf16_f32 v{WF+2*c}, v{ACC+4*c}, v{ACC+4*c+1}")
        a(f"v_cvt_pk_bf16_f32 v{WF+2*c+1}, v{ACC+4*c+2}, v{ACC+4*c+3}")
        a(f"global_store_dwordx2 v7, v[{WF+2*c}:{WF+2*c+1}], s[48:49] offset:{32*c}")
    a("K4_END:\ns_endpgm")
    kernels.append(("k4_kernel", 256, 256, 65536, a.lines, 152, 56))

def gen_k5(kernels):
    a = Asm()
    a("""
    s_cmp_ge_u32 s2, 256
    s_cbranch_scc1 K5_END
    s_load_dwordx2 s[16:17], s[0:1], 96
    s_load_dwordx2 s[32:33], s[0:1], 128
    """)
    lane_consts(a); ln_consts(a)
    a("""
    s_and_b32 s4, s2, 7
    s_lshl_b32 s4, s4, 1
    s_lshr_b32 s5, s2, 7
    s_add_u32 s4, s4, s5
    s_bfe_u32 s5, s2, 0x40003
    s_waitcnt lgkmcnt(0)
    """)
    srd(a, 40, 16, 0, 512 * 3584)
    add64(a, 46, 32, LY.X1); add64(a, 48, 32, LY.G)
    A0, A1, T, ACC, WF = 24, 88, 152, 164, 220
    a("""
    s_lshl_b32 s6, s4, 7
    s_lshl_b32 s7, s8, 5
    s_add_u32 s6, s6, s7
    v_add_u32 v7, s6, v9
    v_lshlrev_b32 v8, 10, v7
    v_lshl_add_u32 v8, v10, 4, v8
    v_add_u32 v6, 0x4000, v8
    """)
    for s in range(16):
        a(f"global_load_dwordx4 v[{A0+4*s}:{A0+4*s+3}], v8, s[46:47] offset:{64*s}")
    for s in range(16):
        a(f"global_load_dwordx4 v[{A1+4*s}:{A1+4*s+3}], v6, s[46:47] offset:{64*s}")
    a(f"""
    s_bfe_u32 s3, s8, 0x10001
    s_lshl_b32 s3, s3, 3
    v_lshlrev_b32 v5, 1, v10
    v_or_b32 v5, s3, v5
    v_xor_b32 v5, v9, v5
    v_mul_u32_u24 v4, 3584, v10
    v_lshl_add_u32 v4, v5, 4, v4
    s_mul_i32 s7, s5, 224
    v_cmp_gt_u32 vcc, 14, v5
    s_and_saveexec_b64 s[42:43], vcc
    """)
    a.lines[-1] = "    s_and_saveexec_b64 s[50:51], vcc"
    dma_tile(a, 4, 40, 32, 4, 3584, 0, 26, soff0=7)
    a("s_mov_b64 exec, s[50:51]")
    a("""
    v_lshrrev_b32 v5, 2, v9
    v_lshlrev_b32 v3, 1, v5
    v_and_b32 v1, 1, v10
    v_lshl_or_b32 v3, v1, 3, v3
    v_lshl_add_u32 v5, v10, 3, v5
    v_lshlrev_b32 v5, 8, v5
    v_and_b32 v1, 1, v9
    v_lshl_add_u32 v5, v1, 3, v5
    v_bfe_u32 v1, v9, 1, 1
    """)
    for c in range(7):
        a(f"""
        v_add_u32 v{12+c}, {2*c}, v1
        v_xor_b32 v{12+c}, v{12+c}, v3
        v_lshl_add_u32 v{12+c}, v{12+c}, 4, v5
        """)
    a("""
    v_mul_u32_u24 v7, 3584, v7
    v_lshl_add_u32 v7, v10, 3, v7
    v_add_u32 v7, s7, v7
    v_add_u32 v6, 57344, v7
    s_waitcnt vmcnt(48)
    """)
    layernorm_frag(a, A0, A0, T)
    a("s_waitcnt vmcnt(32)")
    layernorm_frag(a, A1, A1, T)
    for r in range(56): a(f"v_mov_b32 v{ACC+r}, 0")
    a("s_waitcnt vmcnt(0)\ns_barrier")
    seq = [(s, c) for s in range(16) for c in range(7)]
    def rd(i):
        s, c = seq[i]; b = WF + 4 * (i % 8)
        for h in range(2):
            a(f"ds_read_b64_tr_b16 v[{b+2*h}:{b+2*h+1}], v{12+c} offset:{((32*s+4*h)*256) & 0xffff}")
    D = 6
    for i in range(D): rd(i)
    for i, (s, c) in enumerate(seq):
        if i + D < len(seq):
            s2_, c2_ = seq[i + D]
            if s2_ == 8:
                a(f"v_add_u32 v{12+c2_}, 0x10000, v{12+c2_}")
            rd(i + D); a(f"s_waitcnt lgkmcnt({2*D})")
        else:
            a(f"s_waitcnt lgkmcnt({2*(len(seq)-1-i)})")
        b = WF + 4 * (i % 8)
        a(f"v_mfma_f32_16x16x32_bf16 v[{ACC+4*c}:{ACC+4*c+3}], v[{b}:{b+3}], v[{A0+4*s}:{A0+4*s+3}], v[{ACC+4*c}:{ACC+4*c+3}]")
        a(f"v_mfma_f32_16x16x32_bf16 v[{ACC+28+4*c}:{ACC+28+4*c+3}], v[{b}:{b+3}], v[{A1+4*s}:{A1+4*s+3}], v[{ACC+28+4*c}:{ACC+28+4*c+3}]")
    for i in range(2):
        for c in range(7):
            x0 = ACC + 28 * i + 4 * c
            for r in range(4): gelu(a, x0 + r, T + 2 * (r & 1))
            o = WF + 2 * (c & 3)
            a(f"v_cvt_pk_bf16_f32 v{o}, v{x0}, v{x0+1}")
            a(f"v_cvt_pk_bf16_f32 v{o+1}, v{x0+2}, v{x0+3}")
            a(f"global_store_dwordx2 v{7 if i == 0 else 6}, v[{o}:{o+1}], s[48:49] offset:{32*c}")
    a("K5_END:\ns_endpgm")
    kernels.append(("k5_kernel", 256, 256, 131072, a.lines, 252, 56))

def gen_k6(kernels):
    a = Asm()
    a("""
    s_cmp_ge_u32 s2, 256
    s_cbranch_scc1 K6_END
    s_load_dwordx4 s[16:19], s[0:1], 104
    s_load_dwordx2 s[32:33], s[0:1], 128
    """)
    lane_consts(a); tile_map_32x8(a)
    a("s_waitcnt lgkmcnt(0)")
    srd(a, 40, 16, 0, 1792 * 1024)
    add64(a, 44, 32, LY.H); add64(a, 46, 32, LY.X1); add64(a, 48, 32, LY.G)
    dma_voff128(a, 4, 1024, 5)
    a("""
    s_lshl_b32 s6, s4, 6
    s_lshl_b32 s7, s8, 4
    s_add_u32 s6, s6, s7
    v_add_u32 v7, s6, v9
    v_mul_u32_u24 v8, 3584, v7
    v_lshl_add_u32 v8, v10, 4, v8
    v_lshlrev_b32 v7, 10, v7
    s_lshl_b32 s7, s5, 7
    v_lshl_add_u32 v7, v10, 3, v7
    v_add_u32 v7, s7, v7
    """)
    NST, NBUF = 7, 4
    AF, ACC, WF, XR = 32, 160, 176, 208
    def issue(st):
        dma_tile(a, 4, 40, 8, 8, 1024, 32768 * (st % NBUF), 26, first=8 * st, soff0=7)
        b = AF + 32 * (st % NBUF)
        for s in range(8):
            a(f"global_load_dwordx4 v[{b+4*s}:{b+4*s+3}], v8, s[48:49] offset:{512*st + 64*s}")
    for st in range(3): issue(st)
    for c in range(4):
        a(f"global_load_dwordx2 v[{XR+2*c}:{XR+2*c+1}], v7, s[46:47] offset:{32*c}")
        a(f"global_load_dwordx2 v[{XR+8+2*c}:{XR+8+2*c+1}], v7, s[44:45] offset:{32*c}")
    for c in range(4): tr_base128(a, 12 + c, 2 * c, 0, 5, 6)
    for c in range(4): a(f"v_add_u32 v{16+c}, 0x10000, v{12+c}")
    for r in range(16): a(f"v_mov_b32 v{ACC+r}, 0")
    a("s_mov_b32 s23, 0xffff0000")
    for st in range(NST):
        later = sum(16 for k in (st + 1, st + 2) if k < NST) + (8 if st <= 2 else 0)
        a(f"s_waitcnt vmcnt({later})\ns_barrier")
        if st + 3 < NST: issue(st + 3)
        buf = st % NBUF
        mfma_loop_64(a, 8, AF + 32 * buf, 12 if buf < 2 else 16, WF, ACC, soff=32768 * (buf & 1))
    a("s_waitcnt vmcnt(0)")
    for c in range(4):
        for r in range(4):
            x = ACC + 4 * c + r
            rnd_bf16(a, x, x)
            for k in range(2):
                src = XR + 8 * k + 2 * c + (r >> 1)
                if r & 1: a(f"v_and_b32 v20, s23, v{src}")
                else: a(f"v_lshlrev_b32 v20, 16, v{src}")
                a(f"v_add_f32 v{x}, v{x}, v20")
                if k == 0: rnd_bf16(a, x, x)
        a(f"v_cvt_pk_bf16_f32 v{WF+2*c}, v{ACC+4*c}, v{ACC+4*c+1}")
        a(f"v_cvt_pk_bf16_f32 v{WF+2*c+1}, v{ACC+4*c+2}, v{ACC+4*c+3}")
        a(f"global_store_dwordx2 v7, v[{WF+2*c}:{WF+2*c+1}], s[18:19] offset:{32*c}")
    a("K6_END:\ns_endpgm")
    kernels.append(("k6_kernel", 256, 256, 131072, a.lines, 224, 56))

def gen_all(kernels):
    gen_k3(kernels); gen_k4(kernels); gen_k5(kernels); gen_k6(kernels)
```

```python
import sys, struct
sys.path.insert(0, "dev")
from asmlib import Asm, fix_hazards
import layout as LY

NAME = "sequential_preLN__ssm_conv_s4__mixer_s_mlp__prompt"
def f2u(f): return struct.unpack("<I", struct.pack("<f", f))[0]
def hx(f): return "0x%08x" % f2u(f)
L2E = 1.4426950408889634
L2E_HI = struct.unpack("<f", struct.pack("<f", L2E))[0]
L2E_LO = L2E - L2E_HI

kernels = []

def add64(a, d, s, imm):
    a(f"s_add_u32 s{d}, s{s}, {imm}\ns_addc_u32 s{d+1}, s{s+1}, 0")

def wave_reduce_sum(a, regs):
    for m in ("row_shr:1 row_mask:0xf bank_mask:0xf", "row_shr:2 row_mask:0xf bank_mask:0xf", "row_shr:4 row_mask:0xf bank_mask:0xf",
              "row_shr:8 row_mask:0xf bank_mask:0xf", "row_bcast:15 row_mask:0xa bank_mask:0xf", "row_bcast:31 row_mask:0xc bank_mask:0xf"):
        for r in regs:
            a(f"v_add_f32_dpp v{r}, v{r}, v{r} {m}")

def rnd_bf16(a, d, s):
    a(f"v_cvt_pk_bf16_f32 v{d}, v{s}, v{s}\nv_lshlrev_b32 v{d}, 16, v{d}")

def gen_k1():
    a = Asm()
    PAR, KD, RED = 0, 4096, 24576
    a(f"""
    s_cmp_ge_u32 s2, 256
    s_cbranch_scc1 K1_END
    s_load_dwordx16 s[16:31], s[0:1], 0
    s_load_dwordx2 s[32:33], s[0:1], 128
    v_lshlrev_b32 v1, 2, v0
    v_add_u32 v2, 0x1000, v1
    s_lshl_b32 s3, s2, 9
    v_lshlrev_b32 v3, 1, v0
    v_add_u32 v3, s3, v3
    v_lshrrev_b32 v4, 7, v0
    v_lshlrev_b32 v4, 1, v4
    s_lshl_b32 s3, s2, 2
    v_add_u32 v4, s3, v4
    v_mov_b32 v28, 0
    v_mov_b32 v29, 0
    v_mov_b32 v30, 0
    v_mov_b32 v31, 0
    v_lshlrev_b32 v5, 4, v0
    s_lshl_b32 s3, s2, 13
    s_waitcnt lgkmcnt(0)
    s_add_u32 s34, s16, s3
    s_addc_u32 s35, s17, 0
    """)
    for i in range(6):
        a(f"global_load_ushort v{20+i}, v3, s[{18+2*i}:{19+2*i}]")
    a("global_load_ushort v26, v4, s[30:31]")
    for r in range(8):
        a(f"global_load_dword v{10+r}, v{1 if r < 4 else 2}, s[34:35] offset:{(r & 3) * 1024}")
    for i in range(5):
        a(f"ds_write_b128 v5, v[28:31] offset:{KD + 4096 * i}")
    a("s_waitcnt vmcnt(8)")
    for i in range(7):
        a(f"v_lshlrev_b32 v{20+i}, 16, v{20+i}")
    a(f"""
    s_mov_b32 s4, {hx(L2E_HI)}
    s_mov_b32 s5, {hx(L2E_LO)}
    s_mov_b32 s6, {hx(0.6931471805599453)}
    v_mul_f32 v27, s4, v26
    v_fma_f32 v28, v26, s4, -v27
    v_fmac_f32 v28, s5, v26
    v_exp_f32 v27, v27
    v_mul_f32 v28, s6, v28
    v_fma_f32 v27, v27, v28, v27
    """)
    rnd_bf16(a, 27, 27)
    a(f"""
    v_mul_f32 v20, v27, v20
    v_mul_f32 v21, v27, v21
    v_mul_f32 v22, v27, v22
    v_mul_f32 v23, v27, v23
    v_mul_f32 v32, s4, v20
    v_mul_f32 v33, 0.15915494, v21
    v_mul_f32 v34, v24, v22
    v_mul_f32 v35, v24, v23
    v_fma_f32 v34, -v25, v23, v34
    v_fma_f32 v35, v25, v22, v35
    ds_write_b128 v5, v[32:35] offset:{PAR}
    s_mov_b32 s7, {hx(2048.0)}
    v_mul_f32 v36, s7, v32
    v_mul_f32 v37, s7, v33
    v_fract_f32 v37, v37
    v_exp_f32 v36, v36
    v_sin_f32 v38, v37
    v_cos_f32 v39, v37
    v_mul_f32 v39, v34, v39
    v_fma_f32 v39, -v35, v38, v39
    v_mul_f32 v39, v36, v39
    """)
    wave_reduce_sum(a, [39])
    a(f"""
    v_lshrrev_b32 v6, 6, v0
    v_readfirstlane_b32 s8, v6
    v_and_b32 v6, 15, v0
    v_bfe_u32 v7, v0, 4, 2
    s_lshr_b32 s9, s8, 1
    s_mul_i32 s9, s9, 10240
    s_add_u32 s9, s9, {KD}
    v_lshlrev_b32 v40, 1, v6
    v_cvt_f32_u32 v41, v40
    v_add_u32 v40, 1, v40
    v_cvt_f32_u32 v42, v40
    v_lshlrev_b32 v40, 5, v6
    v_cvt_f32_u32 v44, v40
    v_lshlrev_b32 v40, 2, v6
    v_add_u32 v40, 0x200, v40
    v_and_b32 v45, 3, v6
    v_lshlrev_b32 v45, 3, v45
    v_bfe_u32 v46, v6, 2, 1
    v_lshlrev_b32 v46, 9, v46
    v_add3_u32 v45, v45, v46, 0
    v_add_u32 v45, 0x400, v45
    v_cmp_gt_u32 vcc, 8, v6
    v_cndmask_b32 v40, v45, v40, vcc
    v_cvt_f32_u32 v43, v40
    s_lshl_b32 s10, s8, 10
    v_lshlrev_b32 v8, 4, v7
    v_add_u32 v8, s10, v8
    s_waitcnt lgkmcnt(0)
    s_barrier
    """)
    a(f"""
    v_mov_b32 v9, s9
    s_mov_b32 exec_lo, 0
    s_mov_b32 exec_hi, 0x80000000
    ds_add_f32 v9, v39 offset:{4 * 2048}
    s_mov_b64 exec, -1
    """)
    for r in range(48, 60): a(f"v_mov_b32 v{r}, 0")
    a(f"ds_read_b128 v[60:63], v8 offset:{PAR}")
    F = [41, 42, 43, 44]
    for i in range(16):
        P = 60 + 4 * (i & 1); Pn = 60 + 4 * ((i + 1) & 1)
        a("s_waitcnt lgkmcnt(0)")
        if i < 15: a(f"ds_read_b128 v[{Pn}:{Pn+3}], v8 offset:{PAR + 64 * (i + 1)}")
        for j in range(4): a(f"v_mul_f32 v{70+j}, v{P}, v{F[j]}")
        for j in range(4): a(f"v_mul_f32 v{74+j}, v{P+1}, v{F[j]}")
        for j in range(4): a(f"v_fract_f32 v{74+j}, v{74+j}")
        for j in range(4): a(f"v_exp_f32 v{70+j}, v{70+j}")
        for j in range(4): a(f"v_sin_f32 v{78+j}, v{74+j}")
        for j in range(4): a(f"v_cos_f32 v{74+j}, v{74+j}")
        for j in range(4): a(f"v_mul_f32 v{78+j}, v{70+j}, v{78+j}")
        for j in range(4): a(f"v_mul_f32 v{74+j}, v{70+j}, v{74+j}")
        a(f"""
        v_mul_f32 v82, v{P+2}, v77
        v_mul_f32 v83, v{P+2}, v81
        v_fma_f32 v82, -v{P+3}, v81, v82
        v_fma_f32 v83, -v{P+3}, v77, -v83
        """)
        for j in range(3): a(f"v_mfma_f32_16x16x4_f32 v[{48+4*j}:{51+4*j}], v{74+j}, v82, v[{48+4*j}:{51+4*j}]")
        for j in range(3): a(f"v_mfma_f32_16x16x4_f32 v[{48+4*j}:{51+4*j}], v{78+j}, v83, v[{48+4*j}:{51+4*j}]")
    a(f"""
    v_lshlrev_b32 v60, 5, v7
    v_lshlrev_b32 v61, 7, v6
    v_add3_u32 v60, v60, v61, s9
    v_lshlrev_b32 v62, 6, v7
    v_add_u32 v62, 0x800, v62
    v_and_b32 v63, 1, v7
    v_lshlrev_b32 v63, 11, v63
    v_add_u32 v63, 0x1000, v63
    v_cmp_gt_u32 vcc, 2, v7
    v_cndmask_b32 v62, v63, v62, vcc
    v_mov_b32 v63, 32
    v_mov_b32 v64, 16
    v_cndmask_b32 v63, v63, v64, vcc
    v_add3_u32 v62, v62, v61, s9
    v_add_u32 v64, v62, v63
    v_add_u32 v65, v64, v63
    v_add_u32 v66, v65, v63
    """)
    for rr in range(4):
        a(f"ds_add_f32 v60, v{48+rr} offset:{8*rr}")
        a(f"ds_add_f32 v60, v{52+rr} offset:{8*rr+4}")
    for rr, ad in enumerate((62, 64, 65, 66)):
        a(f"ds_add_f32 v{ad}, v{56+rr}")
    a("s_waitcnt vmcnt(0)")
    for r in range(8):
        a(f"v_lshlrev_b32 v{70+2*r}, 16, v{10+r}\nv_and_b32 v{71+2*r}, 0xffff0000, v{10+r}")
    for r in range(8):
        a(f"v_add_f32 v{90+r}, v{70+2*r}, v{71+2*r}")
    wave_reduce_sum(a, list(range(90, 98)))
    a(f"""
    s_lshl_b32 s10, s8, 5
    v_mov_b32 v9, s10
    s_mov_b32 exec_lo, 0
    s_mov_b32 exec_hi, 0x80000000
    ds_write_b128 v9, v[90:93] offset:{RED}
    ds_write_b128 v9, v[94:97] offset:{RED + 16}
    s_mov_b64 exec, -1
    v_mov_b32 v9, 0
    s_waitcnt lgkmcnt(0)
    s_barrier
    """)
    def gather_red(off):
        for w in range(4):
            for hh in range(2):
                a(f"ds_read_b128 v[{100+8*w+4*hh}:{103+8*w+4*hh}], v9 offset:{off + 32*w + 16*hh}")
        a("s_waitcnt lgkmcnt(0)")
        for r in range(8):
            a(f"v_add_f32 v{100+r}, v{100+r}, v{108+r}\nv_add_f32 v{116+r}, v{116+r}, v{124+r}")
        for r in range(8):
            a(f"v_add_f32 v{100+r}, v{100+r}, v{116+r}")
    gather_red(RED)
    a(f"s_mov_b32 s11, {hx(1.0/512)}")
    for r in range(8):
        a(f"v_mul_f32 v{140+r}, s11, v{100+r}")
    for r in range(8):
        a(f"""
        v_sub_f32 v98, v{70+2*r}, v{140+r}
        v_sub_f32 v99, v{71+2*r}, v{140+r}
        v_mul_f32 v{90+r}, v98, v98
        v_fmac_f32 v{90+r}, v99, v99
        """)
    wave_reduce_sum(a, list(range(90, 98)))
    a(f"""
    v_mov_b32 v9, s10
    s_mov_b32 exec_lo, 0
    s_mov_b32 exec_hi, 0x80000000
    ds_write_b128 v9, v[90:93] offset:{RED + 128}
    ds_write_b128 v9, v[94:97] offset:{RED + 128 + 16}
    s_mov_b64 exec, -1
    v_mov_b32 v9, 0
    s_waitcnt lgkmcnt(0)
    s_barrier
    """)
    gather_red(RED + 128)
    a(f"s_mov_b32 s12, {hx(1e-5)}")
    for r in range(8):
        a(f"v_mul_f32 v{100+r}, s11, v{100+r}")
        rnd_bf16(a, 100 + r, 100 + r)
        a(f"v_add_f32 v{100+r}, s12, v{100+r}")
        rnd_bf16(a, 100 + r, 100 + r)
        a(f"v_sqrt_f32 v{100+r}, v{100+r}")
        rnd_bf16(a, 100 + r, 100 + r)
        a(f"v_rcp_f32 v{108+r}, v{100+r}")
        rnd_bf16(a, 140 + r, 140 + r)
    for r in range(8):
        for e in range(2):
            x = 70 + 2 * r + e
            a(f"v_sub_f32 v{x}, v{x}, v{140+r}")
            rnd_bf16(a, x, x)
            a(f"""
            v_mul_f32 v98, v{x}, v{108+r}
            v_fma_f32 v99, -v98, v{100+r}, v{x}
            v_fma_f32 v{x}, v99, v{108+r}, v98
            """)
    a("s_mov_b32 s13, 0x05040100\ns_mov_b32 s14, 0x07060302")
    for q in range(4):
        a(f"v_cvt_pk_bf16_f32 v{116+q}, v{70+4*q}, v{72+4*q}")
        a(f"v_cvt_pk_bf16_f32 v{120+q}, v{71+4*q}, v{73+4*q}")
        a(f"v_perm_b32 v{124+q}, v{11+2*q}, v{10+2*q}, s13")
        a(f"v_perm_b32 v{128+q}, v{11+2*q}, v{10+2*q}, s14")
    UB = LY.UROW * 2
    a(f"""
    s_lshl_b32 s3, s2, 4
    v_mul_u32_u24 v1, {2*UB}, v0
    v_add_u32 v1, s3, v1
    v_add_u32 v2, {UB}, v1
    v_lshlrev_b32 v3, 13, v0
    v_add_u32 v3, s3, v3
    v_add_u32 v4, 0x1000, v3
    """)
    add64(a, 36, 32, LY.UT); add64(a, 38, 32, LY.XT); add64(a, 40, 32, LY.KH)
    a(f"""
    global_store_dwordx4 v1, v[116:119], s[36:37] offset:64
    global_store_dwordx4 v2, v[120:123], s[36:37] offset:64
    global_store_dwordx4 v3, v[124:127], s[38:39]
    global_store_dwordx4 v4, v[128:131], s[38:39]
    """)
    a(f"""
    v_and_b32 v1, 15, v0
    v_bfe_u32 v2, v0, 4, 1
    v_lshlrev_b32 v3, 4, v1
    v_add_u32 v4, 0x1000, v3
    v_cmp_gt_u32 vcc, 4, v1
    v_cndmask_b32 v3, v4, v3, vcc
    s_lshl_b32 s3, s2, 1
    v_add_u32 v2, s3, v2
    v_mul_u32_u24 v2, {UB}, v2
    v_add_u32 v3, v2, v3
    v_mov_b32 v28, 0
    v_mov_b32 v29, 0
    v_mov_b32 v30, 0
    v_mov_b32 v31, 0
    v_cmp_gt_u32 vcc, 32, v0
    s_and_saveexec_b64 s[42:43], vcc
    global_store_dwordx4 v3, v[28:31], s[36:37]
    s_mov_b64 exec, s[42:43]
    """)
    a(f"s_mul_i32 s3, s2, {2*2*LY.KLEN*2}")
    for it in range(3):
        a(f"""
        v_add_u32 v1, {256*it}, v0
        v_cmp_le_u32 vcc, 320, v1
        v_subrev_u32 v2, 320, v1
        v_cndmask_b32 v1, v1, v2, vcc
        v_mov_b32 v2, {KD}
        v_mov_b32 v3, {KD + 10240}
        v_cndmask_b32 v2, v2, v3, vcc
        v_mov_b32 v3, 0
        v_mov_b32 v4, {2*LY.KLEN*2}
        v_cndmask_b32 v3, v3, v4, vcc
        v_lshlrev_b32 v4, 4, v1
        v_add3_u32 v3, v3, v4, s3
        v_lshlrev_b32 v1, 3, v1
        v_sub_u32 v1, {LY.KOFF}, v1
        """)
        for e in range(8):
            a(f"""
            v_subrev_u32 v{50+e}, {e}, v1
            v_min_u32 v{60+e}, 0x7ff, v{50+e}
            v_cvt_f32_u32 v{60+e}, v{60+e}
            """)
            rnd_bf16(a, 60 + e, 60 + e)
            a(f"""
            v_cvt_u32_f32 v{60+e}, v{60+e}
            v_lshl_add_u32 v{60+e}, v{60+e}, 2, v2
            ds_read_b32 v{70+e}, v{60+e}
            """)
        a("s_waitcnt lgkmcnt(0)")
        for e in range(8):
            a(f"""
            v_cmp_gt_u32 vcc, 0x800, v{50+e}
            v_cndmask_b32 v{70+e}, 0, v{70+e}, vcc
            """)
        for q in range(4):
            a(f"""
            v_cvt_pk_bf16_f32 v{80+q}, v{70+2*q}, v{71+2*q}
            v_lshlrev_b32 v60, 16, v{80+q}
            v_and_b32 v61, 0xffff0000, v{80+q}
            v_sub_f32 v60, v{70+2*q}, v60
            v_sub_f32 v61, v{71+2*q}, v61
            v_cvt_pk_bf16_f32 v{84+q}, v60, v61
            """)
        if it == 2:
            a("v_cmp_gt_u32 vcc, 128, v0\ns_and_saveexec_b64 s[42:43], vcc")
        a(f"""
        v_add_u32 v4, {LY.KLEN*2}, v3
        global_store_dwordx4 v3, v[80:83], s[40:41]
        global_store_dwordx4 v4, v[84:87], s[40:41]
        """)
        if it == 2: a("s_mov_b64 exec, s[42:43]")
    a("K1_END:\ns_endpgm")
    kernels.append(("k1_kernel", 256, 256, 24832, a.lines, 152, 48))

def emit(kernels):
    out = []
    hdr = open(f"cdna_kernels/{NAME}.s.ref").read().split("\n")
    for ln in hdr:
        if ln.startswith("; @launch") or not ln.startswith(";"):
            break
        if "Override launch geometry" in ln or "grid=ceil" in ln: continue
        out.append(ln)
    kernels = [k if len(k) == 8 else k + (0,) for k in kernels]
    for (lab, grid, block, lds, lines, nv, ns, na) in kernels:
        out.append(f"; @launch kernel={lab} grid=({grid},1,1) block=({block},1,1) lds={lds}")
    out.append('.amdgcn_target "amdgcn-amd-amdhsa--gfx950"')
    out.append(".text")
    for (lab, grid, block, lds, lines, nv, ns, na) in kernels:
        out += [f".globl {lab}", ".p2align 8", f".type {lab},@function", f"{lab}:"]
        out += fix_hazards(lines)
    out.append('.section .rodata,"a"')
    for (lab, grid, block, lds, lines, nv, ns, na) in kernels:
        acc = (nv + 3) // 4 * 4
        out += [".p2align 6", f".amdhsa_kernel {lab}", f"  .amdhsa_next_free_vgpr {acc + na if na else nv}", f"  .amdhsa_next_free_sgpr {ns}",
                f"  .amdhsa_accum_offset {acc}", "  .amdhsa_group_segment_fixed_size 0", "  .amdhsa_kernarg_size 136",
                "  .amdhsa_user_sgpr_count 2", "  .amdhsa_user_sgpr_kernarg_segment_ptr 1", "  .amdhsa_system_sgpr_workgroup_id_x 1",
                ".end_amdhsa_kernel"]
    return "\n".join(out) + "\n"

if __name__ == "__main__":
    gen_k1()
    import gen2
    gen2.gen_all(kernels)
    import gen3
    gen3.gen_all(kernels)
    dst = sys.argv[1] if len(sys.argv) > 1 else f"cdna_kernels/{NAME}.s"
    open(dst, "w").write(emit(kernels))
    print("wrote", dst)
```

```python
import re

TRANS = ("v_exp_f32", "v_log_f32", "v_rcp_f32", "v_rsq_f32", "v_sqrt_f32", "v_sin_f32", "v_cos_f32", "v_rcp_iflag_f32")

def _regs(tok):
    tok = tok.strip()
    out = set()
    t = tok.replace("-", "").replace("|", "")
    m = re.match(r"^abs\((.*)\)$", t)
    if m: t = m.group(1)
    m = re.match(r"^([vas])(\d+)$", t)
    if m:
        out.add((m.group(1), int(m.group(2)))); return out
    m = re.match(r"^([vas])\[(\d+):(\d+)\]$", t)
    if m:
        for i in range(int(m.group(2)), int(m.group(3)) + 1): out.add((m.group(1), i))
        return out
    if t in ("vcc", "vcc_lo", "vcc_hi"): out.add(("s", "vcc"))
    if t in ("exec", "exec_lo", "exec_hi"): out.add(("s", "exec"))
    if t == "m0": out.add(("s", "m0"))
    return out

class Ins:
    def __init__(self, text):
        self.text = text
        body = text.split(";")[0].strip()
        self.label = body.endswith(":")
        self.directive = body.startswith(".")
        self.op = ""
        self.w = set(); self.r = set()
        self.kind = "other"
        if not body or self.label or self.directive:
            self.kind = "none"; return
        parts = body.split(None, 1)
        self.op = op = parts[0]
        rest = parts[1] if len(parts) > 1 else ""
        ops = []; depth = 0; cur = ""
        for ch in rest:
            if ch in "[(": depth += 1
            if ch in "])": depth -= 1
            if ch == "," and depth == 0: ops.append(cur); cur = ""
            else: cur += ch
        ops.append(cur)
        mods = ""
        if ops:
            lp = ops[-1].strip().split(None, 1)
            if lp:
                ops[-1] = lp[0]; mods = lp[1] if len(lp) > 1 else ""
        self.mods = mods
        ops = [o.strip() for o in ops if o.strip()]
        self.ops = ops
        R = lambda i: _regs(ops[i]) if i < len(ops) else set()
        allr = lambda a: set().union(*[_regs(o) for o in ops[a:]]) if len(ops) > a else set()
        self.dpp = "_dpp" in op or "quad_perm" in mods or "row_" in mods
        if op.startswith("v_mfma"):
            self.kind = "mfma"; self.w = R(0); self.ra = R(1) | R(2); self.rc = R(3); self.r = self.ra | self.rc
            self.sgemm = op.endswith("_f32") and ("x4_f32" in op or "x2_f32" in op)
            if "16x16x32" in op: self.passes = 4
            elif "32x32x16" in op: self.passes = 8
            elif "16x16x4_f32" in op: self.passes = 8
            elif "32x32x2_f32" in op: self.passes = 16
            else: raise ValueError(op)
        elif op.startswith("v_"):
            self.kind = "valu"
            if op.startswith("v_cmp"):
                self.w = R(0); self.r = allr(1)
                if op.startswith("v_cmpx"): self.w |= {("s", "exec")}
            elif op.startswith("v_permlane") and "swap" in op:
                self.w = R(0) | R(1); self.r = R(0) | R(1)
            elif "_co_" in op:
                self.w = R(0) | R(1); self.r = allr(2)
            else:
                self.w = R(0); self.r = allr(1)
                if op.startswith(("v_fmac", "v_dot2c", "v_mac", "v_pk_fmac")) or self.dpp: self.r |= R(0)
                if op.startswith("v_cndmask") and len(ops) == 3: self.r |= {("s", "vcc")}
            self.trans = op.split("_e")[0] in TRANS or op in TRANS
        elif op.startswith("ds_"):
            self.kind = "ds"
            if op.startswith(("ds_read", "ds_bpermute", "ds_permute", "ds_swizzle")) or "_rtn" in op:
                self.w = R(0); self.r = allr(1)
            else: self.r = allr(0)
        elif op.startswith(("buffer_", "global_", "flat_")):
            self.kind = "vmem"
            self.lds = (" lds" in (" " + mods)) or "load_lds" in op
            if "load" in op and not self.lds:
                self.w = R(0); self.r = allr(1)
            elif "atomic" in op and "sc0" in mods:
                self.w = R(0); self.r = allr(1)
            else:
                self.r = allr(0)
            if self.lds: self.r |= {("s", "m0")}
            self.widestore = "store" in op and ("x3" in op or "x4" in op)
            if self.widestore:
                self.sdata = R(0) if op.startswith("buffer_") else R(1)
        elif op.startswith("s_"):
            self.kind = "salu"
            if op.startswith(("s_cmp", "s_waitcnt", "s_barrier", "s_branch", "s_cbranch", "s_nop", "s_endpgm", "s_sleep", "s_setprio")):
                self.r = allr(0)
            else:
                self.w = R(0); self.r = allr(1)
                if "saveexec" in op: self.w |= {("s", "exec")}
        self.states = 1
        if op == "s_nop": self.states = int(ops[0], 0) + 1

def need(p, c):
    n = 0
    vw = {x for x in p.w if x[0] in "va"}
    sw = {x for x in p.w if x[0] == "s"}
    if p.kind == "valu":
        if c.kind == "mfma" and vw & c.r: n = max(n, 2)
        if c.kind == "mfma" and ("s", "exec") in sw: n = max(n, 4)
        if c.kind == "valu":
            if p.trans and not c.trans and vw & c.r: n = max(n, 1)
            if c.dpp and vw & c.r: n = max(n, 2)
            if c.op.startswith(("v_readlane", "v_readfirstlane")) and vw & c.r: n = max(n, 1)
            if c.op.startswith("v_permlane") and vw & c.r: n = max(n, 2)
            if sw & c.r:
                n = max(n, 4 if c.op.startswith(("v_readlane", "v_writelane")) else 2)
        if c.kind == "vmem" and sw & c.r: n = max(n, 5)
        if p.op.startswith("v_dot") and (vw & (c.r | c.w)) and c.kind in ("valu", "vmem", "ds", "mfma"):
            if c.op != p.op: n = max(n, 3)
    if p.kind == "mfma":
        big = {2: 5, 4: 8, 8: 12, 16: 20}[p.passes] if not p.sgemm else {2: 4, 4: 6, 8: 10, 16: 18}[p.passes]
        if c.kind == "mfma":
            if p.w & c.ra: n = max(n, big)
            if p.w & c.rc and not (p.w == c.rc and p.passes == c.passes and p.sgemm == c.sgemm):
                n = max(n, {2: 4, 4: 6, 8: 10, 16: 18}[p.passes])
        elif c.kind in ("valu", "vmem", "ds"):
            if p.w & (c.r | c.w): n = max(n, big)
        if c.kind == "valu" and not p.sgemm and p.rc & c.w: n = max(n, {2: 1, 4: 3, 8: 7, 16: 15}[p.passes])
    if p.kind == "vmem" and getattr(p, "widestore", False):
        if p.sdata & c.w: n = max(n, 2 if c.kind == "valu" else 1)
    if p.kind == "salu" and ("s", "m0") in p.w and c.kind == "vmem" and getattr(c, "lds", False): n = max(n, 1)
    return n

def fix_hazards(lines):
    out = []; hist = []
    for t in lines:
        ins = Ins(t)
        if ins.kind == "none":
            out.append(t); continue
        dist = 0; req = 0
        for p in reversed(hist):
            k = need(p, ins)
            if k > dist: req = max(req, k - dist)
            dist += p.states
            if dist > 24: break
        while req > 0:
            k = min(req, 16)
            nop = Ins(f"s_nop {k - 1}")
            out.append(f"    s_nop {k - 1}"); hist.append(nop); req -= k
        out.append(t); hist.append(ins)
        if len(hist) > 64: hist = hist[-40:]
    return out

class Asm:
    def __init__(self): self.lines = []
    def __call__(self, s):
        for ln in s.strip("\n").split("\n"):
            ln = ln.strip()
            if not ln: continue
            self.lines.append(ln if (ln.endswith(":") or ln.startswith(".")) else "    " + ln)
    def label(self, l): self.lines.append(l + ":")

import os
STAMPS = os.environ.get("STAMPS", "0") == "1"
def stamp(a):
    if not STAMPS: return
    i = getattr(a, "nst", 0)
    if i == 0:
        a("s_memrealtime s[94:95]")
    a(f"s_memtime s[{60+2*i}:{61+2*i}]")
    a.nst = i + 1
def flush_stamps(a, k):
    if not STAMPS: return
    n = a.nst
    a("s_memrealtime s[96:97]")
    a(f"""
    s_waitcnt vmcnt(0) lgkmcnt(0)
    s_memtime s[92:93]
    s_waitcnt lgkmcnt(0)
    v_cmp_eq_u32 vcc, 0, v0
    s_and_saveexec_b64 s[98:99], vcc
    s_lshl_b32 s3, s2, 7
    s_add_u32 s3, s3, {0x3000000 + k * 0x10000}
    v_mov_b32 v1, s3
    """)
    for i in range(n):
        a(f"v_mov_b32 v2, s{60+2*i}\nglobal_store_dword v1, v2, s[32:33] offset:{4*i}")
    a(f"v_mov_b32 v2, s92\nglobal_store_dword v1, v2, s[32:33] offset:{4*n}")
    a(f"v_mov_b32 v2, s94\nglobal_store_dword v1, v2, s[32:33] offset:120")
    a(f"v_mov_b32 v2, s96\nglobal_store_dword v1, v2, s[32:33] offset:124")
    a("s_mov_b64 exec, s[98:99]")
```

```python
import sys, struct
from asmlib import Asm, stamp, flush_stamps
import layout as LY
def f2u(f): return struct.unpack("<I", struct.pack("<f", f))[0]
def hx(f): return "0x%08x" % f2u(f)
def add64(a, d, s, imm):
    a(f"s_add_u32 s{d}, s{s}, {imm}\ns_addc_u32 s{d+1}, s{s+1}, 0")
def rnd_bf16(a, d, s):
    a(f"v_cvt_pk_bf16_f32 v{d}, v{s}, v{s}\nv_lshlrev_b32 v{d}, 16, v{d}")
L2E = 1.4426950408889634
L2E_HI = struct.unpack("<f", struct.pack("<f", L2E))[0]
L2E_LO = L2E - L2E_HI

def gen_k2(kernels):
    a = Asm()
    USTR = 4288
    PAR = 0
    CT = PAR + 4096
    KD = CT + 8 * 3072 + 64
    KDS = 8448
    KHL = KD + 2 * KDS
    UC = KHL + 20480
    LDS = UC + 16 * USTR
    RED = UC
    UB = LY.UROW * 2
    a(f"""
    s_cmp_ge_u32 s2, 256
    s_cbranch_scc1 K2_END
    s_load_dwordx16 s[16:31], s[0:1], 0
    s_load_dwordx2 s[34:35], s[0:1], 64
    s_load_dwordx2 s[32:33], s[0:1], 128
    v_lshrrev_b32 v1, 6, v0
    v_readfirstlane_b32 s8, v1
    v_and_b32 v2, 63, v0
    v_and_b32 v9, 15, v2
    v_lshrrev_b32 v10, 4, v2
    s_lshr_b32 s9, s8, 2
    s_and_b32 s10, s8, 3
    s_lshl_b32 s3, s2, 2
    v_and_b32 v3, 31, v2
    s_lshl_b32 s4, s8, 5
    v_add_u32 v3, s4, v3
    s_lshl_b32 s4, s2, 8
    v_add_u32 v4, s4, v3
    v_lshlrev_b32 v4, 1, v4
    s_lshl_b32 s4, s2, 1
    s_add_u32 s4, s4, s9
    s_lshl_b32 s5, s4, 1
    v_mov_b32 v5, s5
    s_waitcnt lgkmcnt(0)
    s_load_dword s15, s[34:35], s3
    """)
    stamp(a)
    for i in range(6):
        a(f"global_load_ushort v{20+i}, v4, s[{18+2*i}:{19+2*i}]")
    a("global_load_ushort v26, v5, s[30:31]")
    add64(a, 36, 32, LY.UT); add64(a, 38, 32, LY.XT); add64(a, 44, 32, LY.HT)
    a(f"""
    v_and_b32 v5, 255, v0
    s_mul_i32 s5, s4, {UB}
    v_lshlrev_b32 v6, 4, v5
    v_add_u32 v6, s5, v6
    s_mul_i32 s5, s9, {8*USTR}
    s_add_u32 s5, s5, {UC}
    v_lshlrev_b32 v7, 4, v5
    v_add_u32 v7, s5, v7
    global_load_dwordx4 v[64:67], v6, s[36:37]
    global_load_dwordx4 v[68:71], v6, s[36:37] offset:16
    v_add_u32 v8, 0x1000, v6
    v_cmp_gt_u32 vcc, 8, v5
    s_and_saveexec_b64 s[42:43], vcc
    global_load_dwordx4 v[72:75], v8, s[36:37]
    global_load_dwordx4 v[76:79], v8, s[36:37] offset:16
    s_mov_b64 exec, s[42:43]
    """)
    a(f"""
    s_lshl_b32 s3, s4, 12
    s_lshl_b32 s6, s10, 10
    s_add_u32 s3, s3, s6
    v_lshlrev_b32 v11, 5, v9
    v_lshl_add_u32 v11, v10, 3, v11
    v_add_u32 v12, s3, v11
    global_load_dwordx2 v[16:17], v12, s[38:39]
    global_load_dwordx2 v[18:19], v12, s[38:39] offset:512
    v_add_u32 v15, s5, v11
    v_add_u32 v15, s6, v15
    """)
    a(f"""
    v_lshlrev_b32 v40, 1, v9
    v_cvt_f32_u32 v41, v40
    v_add_u32 v40, 1, v40
    v_cvt_f32_u32 v42, v40
    v_lshlrev_b32 v40, 5, v9
    v_cvt_f32_u32 v44, v40
    v_lshlrev_b32 v40, 2, v9
    v_add_u32 v40, 0x200, v40
    v_and_b32 v45, 3, v9
    v_lshlrev_b32 v45, 3, v45
    v_bfe_u32 v46, v9, 2, 1
    v_lshlrev_b32 v46, 9, v46
    v_add3_u32 v45, v45, v46, 0
    v_add_u32 v45, 0x400, v45
    v_cmp_gt_u32 vcc, 8, v9
    v_cndmask_b32 v40, v45, v40, vcc
    v_cvt_f32_u32 v43, v40
    s_mov_b32 s4, {hx(L2E_HI)}
    s_mov_b32 s5, {hx(L2E_LO)}
    s_mov_b32 s6, {hx(0.6931471805599453)}
    s_mov_b32 s7, {hx(2048.0)}
    s_mov_b32 s23, 0xffff0000
    v_lshlrev_b32 v3, 4, v3
    s_lshl_b32 s11, s8, 9
    v_lshlrev_b32 v8, 6, v10
    v_add_u32 v8, s11, v8
    s_mul_i32 s11, s8, 3072
    s_add_u32 s11, s11, {CT}
    v_lshlrev_b32 v47, 4, v2
    v_add_u32 v47, s11, v47
    """)
    for r in range(48, 60): a(f"v_mov_b32 v{r}, 0")
    a("s_waitcnt vmcnt(6)")
    stamp(a)
    for i in range(7):
        a(f"v_lshlrev_b32 v{20+i}, 16, v{20+i}")
    a(f"""
    v_mul_f32 v27, s4, v26
    v_fma_f32 v28, v26, s4, -v27
    v_fmac_f32 v28, s5, v26
    v_exp_f32 v27, v27
    v_mul_f32 v28, s6, v28
    v_fma_f32 v27, v27, v28, v27
    """)
    rnd_bf16(a, 27, 27)
    a(f"""
    v_mul_f32 v20, v27, v20
    v_mul_f32 v21, v27, v21
    v_mul_f32 v22, v27, v22
    v_mul_f32 v23, v27, v23
    v_mul_f32 v32, s4, v20
    v_mul_f32 v33, 0.15915494, v21
    v_mul_f32 v34, v24, v22
    v_mul_f32 v35, v24, v23
    v_fma_f32 v34, -v25, v23, v34
    v_fma_f32 v35, v25, v22, v35
    ds_write_b128 v3, v[32:35] offset:{PAR}
    v_mul_f32 v36, s7, v32
    v_mul_f32 v37, s7, v33
    v_fract_f32 v37, v37
    v_exp_f32 v36, v36
    v_sin_f32 v38, v37
    v_cos_f32 v39, v37
    v_mul_f32 v39, v34, v39
    v_fma_f32 v39, -v35, v38, v39
    v_mul_f32 v39, v36, v39
    """)
    for m in ("row_shr:1 row_mask:0xf bank_mask:0xf", "row_shr:2 row_mask:0xf bank_mask:0xf", "row_shr:4 row_mask:0xf bank_mask:0xf",
              "row_shr:8 row_mask:0xf bank_mask:0xf", "row_bcast:15 row_mask:0xa bank_mask:0xf"):
        a(f"v_add_f32_dpp v39, v39, v39 {m}")
    a(f"""
    s_lshl_b32 s11, s8, 2
    v_mov_b32 v36, s11
    s_mov_b32 exec_lo, 0x80000000
    s_mov_b32 exec_hi, 0
    ds_write_b32 v36, v39 offset:{CT + 8*3072}
    s_mov_b64 exec, -1
    s_waitcnt lgkmcnt(0)
    """)
    F = [41, 42, 43, 44]
    for sg in range(2):
        for j in range(4):
            a(f"ds_read_b128 v[{80+4*j}:{83+4*j}], v8 offset:{PAR + 256*sg + 16*j}")
        a("s_waitcnt lgkmcnt(0)")
        for tau in (3, 0, 1, 2):
            T, R = 128, 132
            for j in range(4): a(f"v_mul_f32 v{T+j}, v{80+4*j}, v{F[tau]}")
            for j in range(4): a(f"v_mul_f32 v{R+j}, v{81+4*j}, v{F[tau]}")
            for j in range(4): a(f"v_fract_f32 v{R+j}, v{R+j}")
            for j in range(4): a(f"v_exp_f32 v{T+j}, v{T+j}")
            for j in range(4): a(f"v_sin_f32 v{R+4+j}, v{R+j}")
            for j in range(4): a(f"v_cos_f32 v{R+j}, v{R+j}")
            for j in range(4): a(f"v_mul_f32 v{R+4+j}, v{T+j}, v{R+4+j}")
            for j in range(4): a(f"v_mul_f32 v{R+j}, v{T+j}, v{R+j}")
            if tau == 3:
                for j in range(4):
                    a(f"""
                    v_mul_f32 v{T}, v{82+4*j}, v{R+j}
                    v_mul_f32 v{T+1}, v{82+4*j}, v{R+4+j}
                    v_fma_f32 v{T}, -v{83+4*j}, v{R+4+j}, v{T}
                    v_fma_f32 v{R+4+j}, -v{83+4*j}, v{R+j}, -v{T+1}
                    v_mov_b32 v{R+j}, v{T}
                    """)
            H = 96 + 8 * tau
            for j in range(4): a(f"v_cvt_pk_bf16_f32 v{H+j}, v{R+j}, v{R+4+j}")
            for j in range(4):
                a(f"v_lshlrev_b32 v{T+j}, 16, v{H+j}\nv_and_b32 v{140+j}, s23, v{H+j}")
            for j in range(4):
                a(f"v_sub_f32 v{R+j}, v{R+j}, v{T+j}\nv_sub_f32 v{R+4+j}, v{R+4+j}, v{140+j}")
            for j in range(4): a(f"v_cvt_pk_bf16_f32 v{H+4+j}, v{R+j}, v{R+4+j}")
            if tau != 3:
                acc = 48 + 4 * tau
                a(f"v_mfma_f32_16x16x32_bf16 v[{acc}:{acc+3}], v[{H}:{H+3}], v[120:123], v[{acc}:{acc+3}]")
                a(f"v_mfma_f32_16x16x32_bf16 v[{acc}:{acc+3}], v[{H}:{H+3}], v[124:127], v[{acc}:{acc+3}]")
                a(f"v_mfma_f32_16x16x32_bf16 v[{acc}:{acc+3}], v[{H+4}:{H+7}], v[120:123], v[{acc}:{acc+3}]")
    stamp(a)
    a("s_waitcnt vmcnt(2)")
    for it in range(2):
        b = 64 + 8 * it
        if it == 1:
            a("v_cmp_gt_u32 vcc, 8, v5\ns_and_saveexec_b64 s[42:43], vcc")
        off0 = 4096 * it
        for cc in range(8):
            e = cc >> 1
            if cc & 1 == 0:
                if e % 2 == 0:
                    a(f"ds_write_b128 v7, v[{b+e}:{b+e+3}] offset:{cc*USTR + off0}")
                else:
                    for q in range(4): a(f"v_mov_b32 v{24+q}, v{b+e+q}")
                    a(f"ds_write_b128 v7, v[24:27] offset:{cc*USTR + off0}")
            else:
                t = 28 if (cc & 2) else 88
                for q in range(4): a(f"v_alignbit_b32 v{t+q}, v{b+e+q+1}, v{b+e+q}, 16")
                a(f"ds_write_b128 v7, v[{t}:{t+3}] offset:{cc*USTR + off0}")
        if it == 1: a("s_mov_b64 exec, s[42:43]")
    for tau in range(3):
        a(f"ds_write_b128 v47, v[{48+4*tau}:{51+4*tau}] offset:{1024*tau}")
    a(f"""
    s_mul_i32 s11, s9, {4*3072}
    s_add_u32 s11, s11, {CT}
    v_lshlrev_b32 v24, 2, v5
    v_add_u32 v24, s11, v24
    s_mul_i32 s12, s9, {KDS}
    s_add_u32 s12, s12, {KD}
    v_bfe_u32 v25, v5, 2, 4
    v_lshrrev_b32 v26, 6, v5
    v_and_b32 v27, 3, v5
    v_lshlrev_b32 v28, 7, v25
    v_add_u32 v28, s12, v28
    v_lshl_add_u32 v29, v26, 5, v28
    v_lshl_add_u32 v29, v27, 3, v29
    v_lshlrev_b32 v30, 6, v26
    v_lshl_add_u32 v30, v27, 4, v30
    v_add_u32 v30, 0x800, v30
    v_and_b32 v31, 1, v26
    v_lshlrev_b32 v31, 11, v31
    v_lshl_add_u32 v31, v27, 5, v31
    v_add_u32 v31, 0x1000, v31
    v_cmp_gt_u32 vcc, 2, v26
    v_cndmask_b32 v30, v31, v30, vcc
    v_add_u32 v30, v30, v28
    s_lshl_b32 s13, s9, 4
    v_mov_b32 v31, s13
    s_waitcnt lgkmcnt(0)
    s_barrier
    """)
    for tau in range(3):
        for p in range(4):
            a(f"ds_read_b32 v{48+4*tau+p}, v24 offset:{3072*p + 1024*tau}")
    a(f"ds_read_b128 v[60:63], v31 offset:{CT + 8*3072}")
    a("s_waitcnt lgkmcnt(0)")
    for tau in range(4):
        b = 48 + 4 * tau
        a(f"v_add_f32 v{b}, v{b}, v{b+1}\nv_add_f32 v{b+2}, v{b+2}, v{b+3}\nv_add_f32 v{b}, v{b}, v{b+2}")
    a(f"""
    ds_write2_b32 v29, v48, v52 offset0:0 offset1:1
    ds_write_b32 v30, v56
    v_mov_b32 v31, s12
    ds_write_b32 v31, v60 offset:{4*2048}
    s_waitcnt lgkmcnt(0)
    s_barrier
    """)
    stamp(a)
    for it in range(2):
        if it == 1:
            a("v_cmp_gt_u32 vcc, 128, v0\ns_and_saveexec_b64 s[42:43], vcc\ns_cbranch_execz K2_EXP_DONE")
        a(f"""
        v_add_u32 v1, {512*it}, v0
        v_cmp_le_u32 vcc, 320, v1
        v_subrev_u32 v24, 320, v1
        v_cndmask_b32 v1, v1, v24, vcc
        v_mov_b32 v24, {KD}
        v_mov_b32 v25, {KD + KDS}
        v_cndmask_b32 v24, v24, v25, vcc
        v_mov_b32 v25, {KHL}
        v_mov_b32 v26, {KHL + 10240}
        v_cndmask_b32 v25, v25, v26, vcc
        v_lshl_add_u32 v25, v1, 4, v25
        v_lshlrev_b32 v1, 3, v1
        v_sub_u32 v1, {LY.KOFF}, v1
        """)
        for e in range(8):
            a(f"""
            v_subrev_u32 v{50+e}, {e}, v1
            v_min_u32 v{60+e}, 0x7ff, v{50+e}
            v_cvt_f32_u32 v{60+e}, v{60+e}
            """)
            rnd_bf16(a, 60 + e, 60 + e)
            a(f"""
            v_cvt_u32_f32 v{60+e}, v{60+e}
            v_lshl_add_u32 v{60+e}, v{60+e}, 2, v24
            ds_read_b32 v{70+e}, v{60+e}
            """)
        a("s_waitcnt lgkmcnt(0)")
        for e in range(8):
            a(f"""
            v_cmp_gt_u32 vcc, 0x800, v{50+e}
            v_cndmask_b32 v{70+e}, 0, v{70+e}, vcc
            """)
        for q in range(4):
            a(f"""
            v_cvt_pk_bf16_f32 v{80+q}, v{70+2*q}, v{71+2*q}
            v_lshlrev_b32 v60, 16, v{80+q}
            v_and_b32 v61, 0xffff0000, v{80+q}
            v_sub_f32 v60, v{70+2*q}, v60
            v_sub_f32 v61, v{71+2*q}, v61
            v_cvt_pk_bf16_f32 v{84+q}, v60, v61
            """)
        a("ds_write_b128 v25, v[80:83]\nds_write_b128 v25, v[84:87] offset:5120")
        if it == 1: a("K2_EXP_DONE:\ns_mov_b64 exec, s[42:43]")
    a(f"""
    v_and_b32 v13, 7, v9
    v_mul_u32_u24 v13, {USTR}, v13
    v_and_b32 v14, 8, v9
    v_lshl_add_u32 v14, v10, 3, v14
    v_lshl_add_u32 v13, v14, 1, v13
    s_mul_i32 s4, s9, {8*USTR}
    s_add_u32 s4, s4, {UC}
    v_add_u32 v13, s4, v13
    v_lshlrev_b32 v14, 5, v9
    v_sub_u32 v14, 480, v14
    v_lshl_add_u32 v14, v10, 4, v14
    s_mul_i32 s5, s9, 10240
    s_add_u32 s5, s5, {KHL}
    v_add_u32 v14, s5, v14
    ds_read_b64 v[20:21], v15 offset:64
    ds_read_b64 v[22:23], v15 offset:{512+64}
    """)
    for r in range(32): a(f"v_mov_b32 v{32+r}, 0")
    a("s_waitcnt lgkmcnt(0)\ns_barrier")
    stamp(a)
    def SQ(d0):
        if d0 == 0: return list(range(0, 8)), list(range(0, 8))
        if d0 == 32: return list(range(0, 9)), list(range(-1, 8))
        return list(range(1, 9)), list(range(-1, 7))
    base = 64
    U = {s: base + 4 * s for s in range(9)}
    KHr = {q: base + 36 + 4 * (q + 1) for q in range(-1, 8)}
    KLr = {q: base + 72 + 4 * (q + 1) for q in range(-1, 8)}
    def body(d0):
        S, Q = SQ(d0)
        L = []
        for q in Q:
            o = 2 * (LY.KOFF - 240 - 256 * q - d0)
            L.append(f"ds_read_b128 v[{KHr[q]}:{KHr[q]+3}], v14 offset:{o}")
            L.append(f"ds_read_b128 v[{KLr[q]}:{KLr[q]+3}], v14 offset:{o + 5120}")
        for s in S:
            L.append(f"ds_read_b128 v[{U[s]}:{U[s]+3}], v13 offset:{512*s - 2*d0 + 64}")
        for ln in L: a(ln)
        for k, s in enumerate(S):
            a(f"s_waitcnt lgkmcnt({len(S) - 1 - k})")
            for q in Q:
                t = s + q
                if 0 <= t <= 7:
                    a(f"v_mfma_f32_16x16x32_bf16 v[{32+4*t}:{35+4*t}], v[{U[s]}:{U[s]+3}], v[{KHr[q]}:{KHr[q]+3}], v[{32+4*t}:{35+4*t}]")
                    a(f"v_mfma_f32_16x16x32_bf16 v[{32+4*t}:{35+4*t}], v[{U[s]}:{U[s]+3}], v[{KLr[q]}:{KLr[q]+3}], v[{32+4*t}:{35+4*t}]")
    a("s_cmp_lg_u32 s10, 0\ns_cbranch_scc1 K2_GEN")
    body(0); body(32)
    a("s_branch K2_RED")
    a(f"""
    K2_GEN:
    s_sub_u32 s4, s10, 1
    s_lshl_b32 s4, s4, 7
    v_subrev_u32 v13, s4, v13
    v_subrev_u32 v14, s4, v14
    """)
    body(64); body(96)
    a("K2_RED:")
    stamp(a)
    a(f"""
    s_lshl_b32 s4, s8, 13
    s_add_u32 s4, s4, {RED}
    v_lshlrev_b32 v3, 4, v2
    v_add_u32 v4, s4, v3
    s_lshl_b32 s5, s9, 15
    s_lshl_b32 s6, s10, 11
    s_add_u32 s5, s5, s6
    s_add_u32 s5, s5, {RED}
    v_add_u32 v5, s5, v3
    s_barrier
    """)
    for t in range(8): a(f"ds_write_b128 v4, v[{32+4*t}:{35+4*t}] offset:{1024*t}")
    a("s_waitcnt lgkmcnt(0)\ns_barrier")
    for p in range(4):
        for i in range(2):
            a(f"ds_read_b128 v[{64+8*p+4*i}:{67+8*p+4*i}], v5 offset:{8192*p + 1024*i}")
    a(f"""
    s_lshl_b32 s6, s15, 16
    s_and_b32 s7, s15, 0xffff0000
    s_cmp_eq_u32 s9, 0
    s_cselect_b32 s6, s6, s7
    s_waitcnt vmcnt(0) lgkmcnt(0)
    """)
    for k in range(8):
        a(f"v_add_f32 v{64+k}, v{64+k}, v{72+k}\nv_add_f32 v{80+k}, v{80+k}, v{88+k}")
    for k in range(8): a(f"v_add_f32 v{64+k}, v{64+k}, v{80+k}")
    for i in range(2):
        for r in range(4):
            y = 64 + 4 * i + r
            rnd_bf16(a, y, y)
            usrc = 20 + 2 * i + (r >> 1); xsrc = 16 + 2 * i + (r >> 1)
            if r & 1:
                a(f"v_and_b32 v{90+2*r}, 0xffff0000, v{usrc}\nv_and_b32 v{91+2*r}, 0xffff0000, v{xsrc}")
            else:
                a(f"v_lshlrev_b32 v{90+2*r}, 16, v{usrc}\nv_lshlrev_b32 v{91+2*r}, 16, v{xsrc}")
            a(f"v_mul_f32 v{90+2*r}, s6, v{90+2*r}")
            rnd_bf16(a, 90 + 2 * r, 90 + 2 * r)
            a(f"v_add_f32 v{y}, v{y}, v{90+2*r}")
            rnd_bf16(a, y, y)
            a(f"v_add_f32 v{y}, v{y}, v{91+2*r}")
        a(f"v_cvt_pk_bf16_f32 v{100+2*i}, v{64+4*i}, v{65+4*i}")
        a(f"v_cvt_pk_bf16_f32 v{101+2*i}, v{66+4*i}, v{67+4*i}")
        a(f"global_store_dwordx2 v12, v[{100+2*i}:{101+2*i}], s[44:45] offset:{512*i}")
    flush_stamps(a, 2)
    a("K2_END:\ns_endpgm")
    kernels.append(("k2_kernel", 256, 512, LDS, a.lines, 176, 48))

def gen_all(kernels):
    gen_k2(kernels)
```

```python
import sys, struct
from asmlib import Asm, stamp, flush_stamps
import layout as LY
from gen2 import f2u, hx, add64, rnd_bf16
L2E = 1.4426950408889634
GK0 = -2 * L2E * 0.7978845608028654
GK1 = GK0 * 0.044715

def srd(a, d, base, off, nbytes):
    a(f"""
    s_add_u32 s{d}, s{base}, {off}
    s_addc_u32 s{d+1}, s{base+1}, 0
    s_mov_b32 s{d+2}, {nbytes}
    s_mov_b32 s{d+3}, 0x00020000
    """)

def lane_consts(a):
    a("""
    v_lshrrev_b32 v1, 6, v0
    v_readfirstlane_b32 s8, v1
    v_and_b32 v2, 63, v0
    v_and_b32 v9, 15, v0
    v_bfe_u32 v10, v0, 4, 2
    """)

def dma_voff128(a, vd, ld, vt):
    a(f"""
    v_lshrrev_b32 v{vd}, 3, v2
    v_bfe_u32 v{vt}, v2, 4, 1
    v_lshlrev_b32 v{vt}, 1, v{vt}
    s_and_b32 s3, s8, 1
    s_lshl_b32 s3, s3, 2
    v_or_b32 v{vt}, s3, v{vt}
    v_and_b32 v1, 7, v2
    v_xor_b32 v{vt}, v1, v{vt}
    v_mul_u32_u24 v{vd}, {ld}, v{vd}
    v_lshl_add_u32 v{vd}, v{vt}, 4, v{vd}
    """)

class Dma:
    def __init__(self, a, voff, srdr, rows, ld, sso, soff0):
        self.a, self.voff, self.srdr, self.rows, self.ld, self.sso = a, voff, srdr, rows, ld, sso
        a(f"s_mul_i32 s{sso}, s8, {rows*ld}\ns_lshl_b32 s{sso+1}, s8, 10")
        if soff0 is not None: a(f"s_add_u32 s{sso}, s{sso}, s{soff0}")
    def issue(self, n, ldsbase, voffs=None):
        a = self.a
        for j in range(n):
            vo = self.voff if voffs is None else voffs[j % len(voffs)]
            a(f"s_add_u32 m0, s{self.sso+1}, {ldsbase + 4096*j}")
            a(f"buffer_load_dwordx4 v{vo}, s[{self.srdr}:{self.srdr+3}], s{self.sso} offen lds")
            a(f"s_add_u32 s{self.sso}, s{self.sso}, {4*self.rows*self.ld}")

def tr_base128(a, vd, chunk2_expr_imm, ldsbase, vt1, vt2, wave_chunk=False):
    a(f"""
    v_bfe_u32 v{vt1}, v9, 3, 1
    v_lshlrev_b32 v{vt1}, 1, v{vt1}
    v_and_b32 v{vt2}, 1, v10
    v_lshl_or_b32 v{vt1}, v{vt2}, 2, v{vt1}
    v_bfe_u32 v{vt2}, v9, 1, 1
    """)
    if wave_chunk:
        a(f"s_lshl_b32 s3, s8, 1\nv_add_u32 v{vt2}, s3, v{vt2}")
    else:
        a(f"v_add_u32 v{vt2}, {chunk2_expr_imm}, v{vt2}")
    a(f"""
    v_xor_b32 v{vt1}, v{vt1}, v{vt2}
    v_lshlrev_b32 v{vt1}, 4, v{vt1}
    v_and_b32 v{vt2}, 1, v9
    v_lshl_add_u32 v{vt1}, v{vt2}, 3, v{vt1}
    v_lshrrev_b32 v{vt2}, 2, v9
    v_lshl_add_u32 v{vt2}, v10, 3, v{vt2}
    v_lshl_add_u32 v{vd}, v{vt2}, 7, v{vt1}
    v_add_u32 v{vd}, {ldsbase}, v{vd}
    """)

def xor_reduce(a, r, t):
    a(f"""
    v_mov_b32 v{t}, v{r}
    v_permlane32_swap_b32 v{r}, v{t}
    v_add_f32 v{r}, v{r}, v{t}
    v_mov_b32 v{t}, v{r}
    v_permlane16_swap_b32 v{r}, v{t}
    v_add_f32 v{r}, v{r}, v{t}
    """)

def consts(a):
    a(f"""
    s_mov_b32 s20, 0x3f803f80
    s_mov_b32 s21, {hx(1.0/512)}
    s_mov_b32 s22, {hx(1e-5)}
    s_mov_b32 s23, 0xffff0000
    s_mov_b32 s24, {hx(GK0)}
    s_mov_b32 s25, {hx(GK1)}
    """)

def den_from_var(a, v):
    rnd_bf16(a, v, v)
    a(f"v_add_f32 v{v}, s22, v{v}")
    rnd_bf16(a, v, v)
    a(f"v_sqrt_f32 v{v}, v{v}")
    rnd_bf16(a, v, v)

def gelu4(a, x, t, out):
    a(f"""
    v_cvt_pk_bf16_f32 v{t}, v{x}, v{x+1}
    v_cvt_pk_bf16_f32 v{t+1}, v{x+2}, v{x+3}
    v_lshlrev_b32 v{x}, 16, v{t}
    v_and_b32 v{x+1}, s23, v{t}
    v_lshlrev_b32 v{x+2}, 16, v{t+1}
    v_and_b32 v{x+3}, s23, v{t+1}
    v_pk_mul_f32 v[{t}:{t+1}], v[{x}:{x+1}], v[{x}:{x+1}]
    v_pk_mul_f32 v[{t+2}:{t+3}], v[{x+2}:{x+3}], v[{x+2}:{x+3}]
    v_pk_fma_f32 v[{t}:{t+1}], v[{t}:{t+1}], s[26:27], v[30:31]
    v_pk_fma_f32 v[{t+2}:{t+3}], v[{t+2}:{t+3}], s[26:27], v[30:31]
    v_pk_mul_f32 v[{t}:{t+1}], v[{t}:{t+1}], v[{x}:{x+1}]
    v_pk_mul_f32 v[{t+2}:{t+3}], v[{t+2}:{t+3}], v[{x+2}:{x+3}]
    v_exp_f32 v{t}, v{t}
    v_exp_f32 v{t+1}, v{t+1}
    v_exp_f32 v{t+2}, v{t+2}
    v_exp_f32 v{t+3}, v{t+3}
    v_add_f32 v{t}, 1.0, v{t}
    v_add_f32 v{t+1}, 1.0, v{t+1}
    v_add_f32 v{t+2}, 1.0, v{t+2}
    v_add_f32 v{t+3}, 1.0, v{t+3}
    v_rcp_f32 v{t}, v{t}
    v_rcp_f32 v{t+1}, v{t+1}
    v_rcp_f32 v{t+2}, v{t+2}
    v_rcp_f32 v{t+3}, v{t+3}
    v_pk_mul_f32 v[{x}:{x+1}], v[{x}:{x+1}], v[{t}:{t+1}]
    v_pk_mul_f32 v[{x+2}:{x+3}], v[{x+2}:{x+3}], v[{t+2}:{t+3}]
    v_cvt_pk_bf16_f32 v{out}, v{x}, v{x+1}
    v_cvt_pk_bf16_f32 v{out+1}, v{x+2}, v{x+3}
    """)

def gelu_consts(a):
    a("s_mov_b32 s26, s25\ns_mov_b32 s27, s25\nv_mov_b32 v30, s24\nv_mov_b32 v31, s24")

def ln_correct(a, x, cs, nm, sc):
    a(f"""
    v_pk_fma_f32 v[{x}:{x+1}], v[{cs}:{cs+1}], v[{nm}:{nm+1}], v[{x}:{x+1}]
    v_pk_fma_f32 v[{x+2}:{x+3}], v[{cs+2}:{cs+3}], v[{nm}:{nm+1}], v[{x+2}:{x+3}]
    v_pk_mul_f32 v[{x}:{x+1}], v[{x}:{x+1}], v[{sc}:{sc+1}]
    v_pk_mul_f32 v[{x+2}:{x+3}], v[{x+2}:{x+3}], v[{sc}:{sc+1}]
    """)

def tile_map_32x8(a):
    a("""
    s_and_b32 s4, s2, 7
    s_lshl_b32 s4, s4, 2
    s_lshr_b32 s5, s2, 6
    s_add_u32 s4, s4, s5
    s_bfe_u32 s5, s2, 0x30003
    """)

def sum_partials(a, dst, n, vaddr, sbase, stride, nparts, tmp):
    pass

def gen_k3(kernels):
    a = Asm()
    HTL, WL = 0, 65536
    a("""
    s_cmp_ge_u32 s2, 256
    s_cbranch_scc1 K3_END
    s_load_dwordx2 s[16:17], s[0:1], 80
    s_load_dwordx2 s[32:33], s[0:1], 128
    """)
    lane_consts(a); tile_map_32x8(a); consts(a)
    a("s_waitcnt lgkmcnt(0)")
    stamp(a)
    srd(a, 36, 32, LY.HT, 512 * 4096)
    srd(a, 40, 16, 0, 512 * 1024)
    add64(a, 44, 32, LY.H); add64(a, 46, 32, LY.XB); add64(a, 48, 32, LY.HM); add64(a, 50, 32, LY.CS1)
    dma_voff128(a, 3, 4096, 5)
    dma_voff128(a, 4, 1024, 5)
    a("s_lshl_b32 s6, s4, 7\ns_lshl_b32 s7, s5, 7")
    dh = Dma(a, 3, 36, 8, 4096, 28, 6)
    dw = Dma(a, 4, 40, 8, 1024, 30, 7)
    for ch in range(4):
        dh.issue(4, HTL + 16384 * ch)
        dw.issue(4, WL + 16384 * ch)
    CSR = 208
    a("""
    s_lshl_b32 s7, s5, 8
    v_lshlrev_b32 v6, 4, v10
    v_add_u32 v6, s7, v6
    """)
    for c in range(4):
        a(f"global_load_dwordx4 v[{CSR+4*c}:{CSR+4*c+3}], v6, s[50:51] offset:{64*c}")
    tr_base128(a, 11, 0, HTL, 5, 6, wave_chunk=True)
    for c in range(4): tr_base128(a, 12 + c, 2 * c, WL, 5, 6)
    a("""
    s_lshl_b32 s6, s4, 6
    s_lshl_b32 s7, s8, 4
    s_add_u32 s6, s6, s7
    v_add_u32 v7, s6, v9
    v_lshlrev_b32 v7, 10, v7
    v_lshl_add_u32 v8, v10, 4, v7
    s_lshl_b32 s7, s5, 7
    v_lshl_add_u32 v7, v10, 3, v7
    v_add_u32 v7, s7, v7
    """)
    gelu_consts(a)
    HV, T, ACC, WF = 32, 96, 112, 128
    for r in range(16): a(f"v_mov_b32 v{ACC+r}, 0")
    for r in range(4): a(f"v_mov_b32 v{T+r}, 0")
    for ch in range(4):
        a(f"s_waitcnt vmcnt({4 + 8*(3-ch)})\ns_barrier")
        if ch == 0: stamp(a)
        for s in range(4 * ch, 4 * ch + 4):
            for h in range(2):
                a(f"ds_read_b64_tr_b16 v[{HV+4*s+2*h}:{HV+4*s+2*h+1}], v11 offset:{(32*s+4*h)*128}")
        for s in range(4 * ch, 4 * ch + 4):
            b = WF + 16 * (s & 3)
            for c in range(4):
                for h in range(2):
                    a(f"ds_read_b64_tr_b16 v[{b+4*c+2*h}:{b+4*c+2*h+1}], v{12+c} offset:{(32*s+4*h)*128}")
        for k, s in enumerate(range(4 * ch, 4 * ch + 4)):
            a(f"s_waitcnt lgkmcnt({min(15, 8*(3-k))})")
            b = WF + 16 * (s & 3)
            for c in range(4):
                a(f"v_mfma_f32_16x16x32_bf16 v[{ACC+4*c}:{ACC+4*c+3}], v[{b+4*c}:{b+4*c+3}], v[{HV+4*s}:{HV+4*s+3}], v[{ACC+4*c}:{ACC+4*c+3}]")
                i = 4 * s + c
                a(f"v_dot2_f32_bf16 v{T+(i&1)}, v{HV+i}, s20, v{T+(i&1)}")
                a(f"v_dot2_f32_bf16 v{T+2+(i&1)}, v{HV+i}, v{HV+i}, v{T+2+(i&1)}")
    stamp(a)
    a(f"v_add_f32 v{T}, v{T}, v{T+1}\nv_add_f32 v{T+2}, v{T+2}, v{T+3}")
    xor_reduce(a, T, T + 1); xor_reduce(a, T + 2, T + 3)
    M, VAR, MB, DEN, RC = T, T + 2, T + 4, T + 6, T + 8
    a(f"""
    v_mul_f32 v{M}, s21, v{M}
    v_mul_f32 v{VAR}, s21, v{VAR}
    v_fma_f32 v{VAR}, -v{M}, v{M}, v{VAR}
    v_max_f32 v{VAR}, 0, v{VAR}
    v_mov_b32 v{DEN}, v{VAR}
    """)
    den_from_var(a, DEN)
    rnd_bf16(a, MB, M)
    a(f"""
    v_rcp_f32 v{RC}, v{DEN}
    v_sub_f32 v{M}, v{M}, v{MB}
    v_mul_f32 v{M}, v{M}, v{RC}
    v_mul_f32 v{VAR}, v{VAR}, v{RC}
    v_mul_f32 v{VAR}, v{VAR}, v{RC}
    """)
    rnd_bf16(a, M, M)
    den_from_var(a, VAR)
    a(f"""
    v_fma_f32 v{M}, v{M}, v{DEN}, v{MB}
    v_sub_f32 v{M}, 0, v{M}
    v_mov_b32 v{M+1}, v{M}
    v_mul_f32 v{VAR}, v{VAR}, v{DEN}
    v_rcp_f32 v{VAR}, v{VAR}
    v_sub_f32 v{MB}, 0, v{MB}
    v_mov_b32 v{MB+1}, v{MB}
    v_mov_b32 v{RC+1}, v{RC}
    v_mov_b32 v{VAR+1}, v{VAR}
    """)
    for c in range(8):
        a(f"s_cmp_lg_u32 s5, {c}\ns_cbranch_scc1 K3_S{c}")
        for k in range(8):
            src = HV + 8 * c + k; t = T + 10
            a(f"""
            v_lshlrev_b32 v{t}, 16, v{src}
            v_and_b32 v{t+1}, s23, v{src}
            v_pk_add_f32 v[{t}:{t+1}], v[{t}:{t+1}], v[{MB}:{MB+1}]
            v_cvt_pk_bf16_f32 v{t+2}, v{t}, v{t+1}
            v_lshlrev_b32 v{t}, 16, v{t+2}
            v_and_b32 v{t+1}, s23, v{t+2}
            v_pk_mul_f32 v[{t}:{t+1}], v[{t}:{t+1}], v[{RC}:{RC+1}]
            v_cvt_pk_bf16_f32 v{WF+k}, v{t}, v{t+1}
            """)
        for k, s in enumerate((2 * c, 2 * c + 1)):
            a(f"global_store_dwordx4 v8, v[{HV+4*s}:{HV+4*s+3}], s[44:45] offset:{64*s}")
            a(f"global_store_dwordx4 v8, v[{WF+4*k}:{WF+4*k+3}], s[46:47] offset:{64*s}")
        a(f"K3_S{c}:")
    a("s_nop 1\ns_waitcnt vmcnt(4)")
    for c in range(4):
        ln_correct(a, ACC + 4 * c, CSR + 4 * c, M, VAR)
        gelu4(a, ACC + 4 * c, WF + 16 + 4 * (c & 1) * 2, WF + 8 + 2 * c)
        a(f"global_store_dwordx2 v7, v[{WF+8+2*c}:{WF+9+2*c}], s[48:49] offset:{32*c}")
    flush_stamps(a, 3)
    a("K3_END:\ns_endpgm")
    kernels.append(("k3_kernel", 256, 256, 131072, a.lines, 224, 56))

def a_dma_voffs(a, vd, vt):
    for jj in range(4):
        a(f"s_add_u32 s3, s8, {4*jj}\nv_xor_b32 v{vt}, s3, v2\nv_lshlrev_b32 v{vd+jj}, 4, v{vt}")

def gen_k4(kernels):
    a = Asm()
    WL, AL = 0, 65536
    a("""
    s_cmp_ge_u32 s2, 256
    s_cbranch_scc1 K4_END
    s_load_dwordx2 s[16:17], s[0:1], 88
    s_load_dwordx2 s[32:33], s[0:1], 128
    """)
    lane_consts(a); tile_map_32x8(a); consts(a)
    a("s_waitcnt lgkmcnt(0)")
    stamp(a)
    srd(a, 36, 32, LY.HM, 2048 * 1024)
    srd(a, 40, 16, 0, 512 * 1024)
    add64(a, 46, 32, LY.XB); add64(a, 48, 32, LY.X1); add64(a, 50, 32, LY.ST4)
    dma_voff128(a, 4, 1024, 5)
    a_dma_voffs(a, 16, 5)
    a("""
    s_lshl_b32 s7, s5, 7
    s_lshl_b32 s6, s4, 16
    s_sub_u32 s6, s6, 0x800
    """)
    da = Dma(a, None, 36, 1, 1024, 28, 6)
    dw = Dma(a, 4, 40, 8, 1024, 30, 7)
    da.issue(17, AL, voffs=[16, 17, 18, 19])
    dw.issue(16, WL)
    a("""
    s_lshl_b32 s6, s4, 6
    s_lshl_b32 s7, s8, 4
    s_add_u32 s6, s6, s7
    v_add_u32 v6, s6, v9
    v_lshlrev_b32 v7, 10, v6
    s_lshl_b32 s7, s5, 7
    v_lshl_add_u32 v7, v10, 3, v7
    v_add_u32 v7, s7, v7
    v_lshlrev_b32 v6, 6, v6
    s_lshl_b32 s7, s5, 3
    v_add_u32 v6, s7, v6
    """)
    AF, ACC, WF, XR = 32, 96, 112, 144
    for c in range(4):
        a(f"global_load_dwordx2 v[{XR+2*c}:{XR+2*c+1}], v7, s[46:47] offset:{32*c}")
    for c in range(4): tr_base128(a, 12 + c, 2 * c, WL, 5, 3)
    for kb, sh in enumerate((-1, 1, -2, 2)):
        a(f"""
        s_lshl_b32 s3, s8, 4
        s_add_u32 s3, s3, {2 + sh}
        v_add_u32 v5, s3, v9
        v_and_b32 v3, 15, v5
        v_xor_b32 v3, v10, v3
        v_lshlrev_b32 v3, 4, v3
        v_lshl_add_u32 v{20+kb}, v5, 10, v3
        v_add_u32 v{20+kb}, {AL + 256*kb}, v{20+kb}
        """)
    for r in range(16): a(f"v_mov_b32 v{ACC+r}, 0")
    a("s_waitcnt vmcnt(4)\ns_barrier")
    stamp(a)
    for s in range(16):
        if s & 3: a(f"v_xor_b32 v24, {64*(s&3)}, v{20+(s>>2)}")
        a(f"ds_read_b128 v[{AF+4*s}:{AF+4*s+3}], v{24 if s & 3 else 20+(s>>2)}")
    def rd(s):
        b = WF + 16 * (s & 1)
        for c in range(4):
            for h in range(2):
                a(f"ds_read_b64_tr_b16 v[{b+4*c+2*h}:{b+4*c+2*h+1}], v{12+c} offset:{(32*s+4*h)*128}")
    rd(0)
    for s in range(16):
        if s + 1 < 16: rd(s + 1); a("s_waitcnt lgkmcnt(8)")
        else: a("s_waitcnt lgkmcnt(0)")
        b = WF + 16 * (s & 1)
        for c in range(4):
            a(f"v_mfma_f32_16x16x32_bf16 v[{ACC+4*c}:{ACC+4*c+3}], v[{b+4*c}:{b+4*c+3}], v[{AF+4*s}:{AF+4*s+3}], v[{ACC+4*c}:{ACC+4*c+3}]")
    stamp(a)
    a("s_waitcnt vmcnt(0)\nv_mov_b32 v24, 0\nv_mov_b32 v25, 0")
    for c in range(4):
        x = ACC + 4 * c
        a(f"""
        v_cvt_pk_bf16_f32 v26, v{x}, v{x+1}
        v_cvt_pk_bf16_f32 v27, v{x+2}, v{x+3}
        v_lshlrev_b32 v{x}, 16, v26
        v_and_b32 v{x+1}, s23, v26
        v_lshlrev_b32 v{x+2}, 16, v27
        v_and_b32 v{x+3}, s23, v27
        v_lshlrev_b32 v26, 16, v{XR+2*c}
        v_and_b32 v27, s23, v{XR+2*c}
        v_lshlrev_b32 v28, 16, v{XR+2*c+1}
        v_and_b32 v29, s23, v{XR+2*c+1}
        v_pk_add_f32 v[{x}:{x+1}], v[{x}:{x+1}], v[26:27]
        v_pk_add_f32 v[{x+2}:{x+3}], v[{x+2}:{x+3}], v[28:29]
        v_cvt_pk_bf16_f32 v{WF+2*c}, v{x}, v{x+1}
        v_cvt_pk_bf16_f32 v{WF+2*c+1}, v{x+2}, v{x+3}
        global_store_dwordx2 v7, v[{WF+2*c}:{WF+2*c+1}], s[48:49] offset:{32*c}
        """)
        for k in range(2):
            a(f"v_dot2_f32_bf16 v24, v{WF+2*c+k}, s20, v24\nv_dot2_f32_bf16 v25, v{WF+2*c+k}, v{WF+2*c+k}, v25")
    xor_reduce(a, 24, 26); xor_reduce(a, 25, 26)
    a("""
    v_cmp_gt_u32 vcc, 16, v2
    s_and_saveexec_b64 s[42:43], vcc
    global_store_dwordx2 v6, v[24:25], s[50:51]
    s_mov_b64 exec, s[42:43]
    """)
    flush_stamps(a, 4)
    a("K4_END:\ns_endpgm")
    kernels.append(("k4_kernel", 256, 256, 65536 + 68 * 1024, a.lines, 152, 56))

def gen_k5(kernels):
    a = Asm()
    a("""
    s_cmp_ge_u32 s2, 256
    s_cbranch_scc1 K5_END
    s_load_dwordx2 s[16:17], s[0:1], 96
    s_load_dwordx2 s[32:33], s[0:1], 128
    """)
    lane_consts(a); consts(a)
    a("""
    s_and_b32 s4, s2, 7
    s_lshl_b32 s4, s4, 1
    s_lshr_b32 s5, s2, 7
    s_add_u32 s4, s4, s5
    s_bfe_u32 s5, s2, 0x40003
    s_waitcnt lgkmcnt(0)
    """)
    stamp(a)
    srd(a, 36, 32, LY.X1, 2048 * 1024)
    srd(a, 40, 16, 0, 512 * 3584)
    add64(a, 46, 32, LY.ST4); add64(a, 48, 32, LY.G); add64(a, 50, 32, LY.CS3)
    a(f"""
    s_bfe_u32 s3, s8, 0x10001
    s_lshl_b32 s3, s3, 3
    v_lshlrev_b32 v5, 1, v10
    v_or_b32 v5, s3, v5
    v_xor_b32 v5, v9, v5
    v_mul_u32_u24 v4, 3584, v10
    v_lshl_add_u32 v4, v5, 4, v4
    v_cmp_gt_u32 s[52:53], 14, v5
    s_lshl_b32 s3, s8, 2
    v_add_u32 v5, s3, v10
    v_xor_b32 v5, v9, v5
    v_lshlrev_b32 v3, 10, v10
    v_lshl_add_u32 v3, v5, 4, v3
    s_mul_i32 s7, s5, 224
    s_lshl_b32 s6, s4, 17
    """)
    dw = Dma(a, 4, 40, 4, 3584, 30, 7)
    a("s_mul_i32 s28, s8, 4096\ns_add_u32 s28, s28, s6\ns_lshl_b32 s29, s8, 10")
    def issue(st):
        buf = 65536 * (st & 1)
        for j in range(8):
            a(f"s_add_u32 m0, s29, {buf + 4096*j}")
            a(f"s_add_u32 s3, s28, {16384*j + 256*st}")
            a(f"buffer_load_dwordx4 v3, s[36:39], s3 offen lds")
        a("s_mov_b64 exec, s[52:53]")
        dw.issue(8, buf + 32768)
        a("s_mov_b64 exec, -1")
    issue(0); issue(1)
    AFR, T, ACC, WF, CSR, STR = 180, 40, 56, 112, 144, 172
    a("""
    s_lshl_b32 s6, s4, 7
    s_lshl_b32 s7, s8, 5
    s_add_u32 s6, s6, s7
    v_add_u32 v7, s6, v9
    v_lshlrev_b32 v8, 6, v7
    v_lshl_add_u32 v8, v10, 4, v8
    """)
    a(f"global_load_dwordx4 v[{STR}:{STR+3}], v8, s[46:47]\nglobal_load_dwordx4 v[{STR+4}:{STR+7}], v8, s[46:47] offset:1024")
    a("s_mul_i32 s7, s5, 448\nv_lshlrev_b32 v6, 4, v10\nv_add_u32 v6, s7, v6")
    for c in range(7):
        a(f"global_load_dwordx4 v[{CSR+4*c}:{CSR+4*c+3}], v6, s[50:51] offset:{64*c}")
    a("""
    v_lshrrev_b32 v5, 2, v9
    v_lshlrev_b32 v6, 1, v5
    v_and_b32 v1, 1, v10
    v_lshl_or_b32 v6, v1, 3, v6
    v_lshl_add_u32 v5, v10, 3, v5
    v_lshlrev_b32 v5, 8, v5
    v_and_b32 v1, 1, v9
    v_lshl_add_u32 v5, v1, 3, v5
    v_add_u32 v5, 0x8000, v5
    v_bfe_u32 v1, v9, 1, 1
    """)
    for c in range(7):
        a(f"""
        v_add_u32 v{12+c}, {2*c}, v1
        v_xor_b32 v{12+c}, v{12+c}, v6
        v_lshl_add_u32 v{12+c}, v{12+c}, 4, v5
        """)
    a("""
    v_xor_b32 v5, v10, v9
    v_lshlrev_b32 v5, 4, v5
    s_lshl_b32 s3, s8, 13
    v_lshl_add_u32 v19, v9, 8, v5
    v_add_u32 v19, s3, v19
    """)
    for sp in range(1, 4): a(f"v_xor_b32 v{19+sp}, {64*sp}, v19")
    a("""
    v_mul_u32_u24 v7, 3584, v7
    v_lshl_add_u32 v7, v10, 3, v7
    s_mul_i32 s7, s5, 224
    v_add_u32 v7, s7, v7
    v_add_u32 v6, 57344, v7
    """)
    gelu_consts(a)
    for r in range(56): a(f"v_mov_b32 v{ACC+r}, 0")
    for st in range(4):
        later = {0: 16 + 9, 1: 9 + 16, 2: 16, 3: 0}[st]
        a(f"s_waitcnt vmcnt({later})\ns_barrier")
        stamp(a)
        boff = 65536 * (st & 1)
        seq = [(sp, c) for sp in range(4) for c in range(7)]
        def rdA(sp):
            b = AFR + 8 * (sp & 1)
            a(f"ds_read_b128 v[{b}:{b+3}], v{19+sp} offset:{boff & 0xffff}")
            a(f"ds_read_b128 v[{b+4}:{b+7}], v{19+sp} offset:{(boff & 0xffff) + 4096}")
        def rd(i):
            sp, c = seq[i]; b = WF + 4 * (i % 8)
            if c == 0: rdA(sp)
            for h in range(2):
                a(f"ds_read_b64_tr_b16 v[{b+2*h}:{b+2*h+1}], v{12+c} offset:{(32*sp+4*h)*256}")
        def cnt(i): return 2 + (2 if seq[i][1] == 0 else 0)
        D = 4
        for i in range(D): rd(i)
        for i, (sp, c) in enumerate(seq):
            if i + D < len(seq): rd(i + D)
            outstanding = sum(cnt(k) for k in range(i + 1, min(i + D + 1, len(seq))))
            a(f"s_waitcnt lgkmcnt({outstanding})")
            b = WF + 4 * (i % 8); af = AFR + 8 * (sp & 1)
            a(f"v_mfma_f32_16x16x32_bf16 v[{ACC+4*c}:{ACC+4*c+3}], v[{b}:{b+3}], v[{af}:{af+3}], v[{ACC+4*c}:{ACC+4*c+3}]")
            a(f"v_mfma_f32_16x16x32_bf16 v[{ACC+28+4*c}:{ACC+28+4*c+3}], v[{b}:{b+3}], v[{af+4}:{af+7}], v[{ACC+28+4*c}:{ACC+28+4*c+3}]")
        if st < 3:
            d = 65536 if (st & 1) == 0 else -65536
            for c in range(7): a(f"v_add_u32 v{12+c}, {d & 0xffffffff}, v{12+c}")
            for sp in range(4): a(f"v_add_u32 v{19+sp}, {d & 0xffffffff}, v{19+sp}")
        if st + 2 < 4:
            a("s_barrier")
            issue(st + 2)
    stamp(a)
    for i in range(2):
        S = STR + 4 * i
        a(f"v_add_f32 v{S}, v{S}, v{S+2}\nv_add_f32 v{S+1}, v{S+1}, v{S+3}")
        xor_reduce(a, S, S + 2); xor_reduce(a, S + 1, S + 2)
        a(f"""
        v_mul_f32 v{S}, s21, v{S}
        v_mul_f32 v{S+2}, s21, v{S+1}
        v_fma_f32 v{S+2}, -v{S}, v{S}, v{S+2}
        v_max_f32 v{S+2}, 0, v{S+2}
        """)
        den_from_var(a, S + 2)
        rnd_bf16(a, S, S)
        a(f"""
        v_rcp_f32 v{S+2}, v{S+2}
        v_sub_f32 v{S}, 0, v{S}
        v_mov_b32 v{S+1}, v{S}
        v_mov_b32 v{S+3}, v{S+2}
        """)
    for i in range(2):
        for c in range(7):
            x0 = ACC + 28 * i + 4 * c
            ln_correct(a, x0, CSR + 4 * c, STR + 4 * i, STR + 4 * i + 2)
            o = WF + 2 * (c & 3)
            gelu4(a, x0, T + 8 * (c & 1), o)
            a(f"global_store_dwordx2 v{7 if i == 0 else 6}, v[{o}:{o+1}], s[48:49] offset:{32*c}")
    flush_stamps(a, 5)
    a("K5_END:\ns_endpgm")
    kernels.append(("k5_kernel", 256, 256, 131072, a.lines, 200, 56))

def gen_k6(kernels):
    a = Asm()
    a("""
    s_cmp_ge_u32 s2, 256
    s_cbranch_scc1 K6_END
    s_load_dwordx4 s[16:19], s[0:1], 104
    s_load_dwordx2 s[32:33], s[0:1], 128
    """)
    lane_consts(a); tile_map_32x8(a)
    a("s_waitcnt lgkmcnt(0)")
    stamp(a)
    srd(a, 36, 32, LY.G, 2048 * 3584)
    srd(a, 40, 16, 0, 1792 * 1024)
    add64(a, 44, 32, LY.H); add64(a, 46, 32, LY.X1)
    dma_voff128(a, 4, 1024, 5)
    a(f"""
    s_lshl_b32 s3, s8, 2
    v_add_u32 v5, s3, v10
    v_xor_b32 v5, v9, v5
    v_mul_u32_u24 v3, 3584, v10
    v_lshl_add_u32 v3, v5, 4, v3
    s_lshl_b32 s7, s5, 7
    s_mul_i32 s6, s4, {64*3584}
    s_mul_i32 s28, s8, {4*3584}
    s_add_u32 s28, s28, s6
    s_lshl_b32 s29, s8, 10
    """)
    dw = Dma(a, 4, 40, 8, 1024, 30, 7)
    NST, NBUF, PF = 14, 5, 4
    def issue(st):
        buf = 32768 * (st % NBUF)
        for j in range(4):
            a(f"s_add_u32 m0, s29, {buf + 4096*j}")
            a(f"s_add_u32 s3, s28, {16*3584*j + 256*st}")
            a(f"buffer_load_dwordx4 v3, s[36:39], s3 offen lds")
        dw.issue(4, buf + 16384)
    for st in range(PF): issue(st)
    a("""
    s_lshl_b32 s6, s4, 6
    s_lshl_b32 s7, s8, 4
    s_add_u32 s6, s6, s7
    v_add_u32 v7, s6, v9
    v_lshlrev_b32 v7, 10, v7
    s_lshl_b32 s7, s5, 7
    v_lshl_add_u32 v7, v10, 3, v7
    v_add_u32 v7, s7, v7
    """)
    AF, ACC, WF, XR = 32, 48, 64, 128
    for c in range(4):
        a(f"global_load_dwordx2 v[{XR+2*c}:{XR+2*c+1}], v7, s[46:47] offset:{32*c}")
        a(f"global_load_dwordx2 v[{XR+8+2*c}:{XR+8+2*c+1}], v7, s[44:45] offset:{32*c}")
    for c in range(4): tr_base128(a, 12 + c, 2 * c, 16384, 5, 6)
    for c in range(4): a(f"v_add_u32 v{16+c}, 0x10000, v{12+c}\nv_add_u32 v{20+c}, 0x20000, v{12+c}")
    a("""
    v_xor_b32 v5, v10, v9
    v_lshlrev_b32 v5, 4, v5
    s_lshl_b32 s3, s8, 12
    v_lshl_add_u32 v144, v9, 8, v5
    v_add_u32 v144, s3, v144
    """)
    for sp in range(1, 4): a(f"v_xor_b32 v{144+sp}, {64*sp}, v144")
    for gp in range(1, 3):
        for sp in range(4): a(f"v_add_u32 v{144+4*gp+sp}, {0x10000*gp}, v{144+sp}")
    for r in range(16): a(f"v_mov_b32 v{ACC+r}, 0")
    a("s_mov_b32 s23, 0xffff0000")
    for st in range(NST):
        later = sum(8 for k in range(st + 1, st + PF) if k < NST) + (8 if st < PF else 0)
        a(f"s_waitcnt vmcnt({later})\ns_barrier")
        if st in (0, 1, 4, 8, 12): stamp(a)
        if st + PF < NST: issue(st + PF)
        buf = st % NBUF; gp = buf >> 1; so = 32768 * (buf & 1)
        for sp in range(4):
            a(f"ds_read_b128 v[{AF+4*sp}:{AF+4*sp+3}], v{144+4*gp+sp} offset:{so}")
        for sp in range(4):
            b = WF + 16 * sp
            for c in range(4):
                for h in range(2):
                    a(f"ds_read_b64_tr_b16 v[{b+4*c+2*h}:{b+4*c+2*h+1}], v{12+4*gp+c} offset:{so + (32*sp+4*h)*128}")
        for sp in range(4):
            a(f"s_waitcnt lgkmcnt({min(15, 8*(3-sp))})")
            b = WF + 16 * sp
            for c in range(4):
                a(f"v_mfma_f32_16x16x32_bf16 v[{ACC+4*c}:{ACC+4*c+3}], v[{b+4*c}:{b+4*c+3}], v[{AF+4*sp}:{AF+4*sp+3}], v[{ACC+4*c}:{ACC+4*c+3}]")
    stamp(a)
    a("s_waitcnt vmcnt(0)")
    for c in range(4):
        x = ACC + 4 * c
        a(f"""
        v_cvt_pk_bf16_f32 v24, v{x}, v{x+1}
        v_cvt_pk_bf16_f32 v25, v{x+2}, v{x+3}
        v_lshlrev_b32 v{x}, 16, v24
        v_and_b32 v{x+1}, s23, v24
        v_lshlrev_b32 v{x+2}, 16, v25
        v_and_b32 v{x+3}, s23, v25
        v_lshlrev_b32 v24, 16, v{XR+2*c}
        v_and_b32 v25, s23, v{XR+2*c}
        v_lshlrev_b32 v26, 16, v{XR+2*c+1}
        v_and_b32 v27, s23, v{XR+2*c+1}
        v_pk_add_f32 v[{x}:{x+1}], v[{x}:{x+1}], v[24:25]
        v_pk_add_f32 v[{x+2}:{x+3}], v[{x+2}:{x+3}], v[26:27]
        v_cvt_pk_bf16_f32 v24, v{x}, v{x+1}
        v_cvt_pk_bf16_f32 v25, v{x+2}, v{x+3}
        v_lshlrev_b32 v{x}, 16, v24
        v_and_b32 v{x+1}, s23, v24
        v_lshlrev_b32 v{x+2}, 16, v25
        v_and_b32 v{x+3}, s23, v25
        v_lshlrev_b32 v24, 16, v{XR+8+2*c}
        v_and_b32 v25, s23, v{XR+8+2*c}
        v_lshlrev_b32 v26, 16, v{XR+8+2*c+1}
        v_and_b32 v27, s23, v{XR+8+2*c+1}
        v_pk_add_f32 v[{x}:{x+1}], v[{x}:{x+1}], v[24:25]
        v_pk_add_f32 v[{x+2}:{x+3}], v[{x+2}:{x+3}], v[26:27]
        v_cvt_pk_bf16_f32 v{WF+2*c}, v{x}, v{x+1}
        v_cvt_pk_bf16_f32 v{WF+2*c+1}, v{x+2}, v{x+3}
        global_store_dwordx2 v7, v[{WF+2*c}:{WF+2*c+1}], s[18:19] offset:{32*c}
        """)
    flush_stamps(a, 6)
    a("K6_END:\ns_endpgm")
    kernels.append(("k6_kernel", 256, 256, 163840, a.lines, 160, 56))

def gen_all(kernels):
    gen_k3(kernels); gen_k4(kernels); gen_k5(kernels); gen_k6(kernels)
```

```python
UROW = 2176
UT = 0
XT = 0x280000
KOFF = 2080
KLEN = 2560
KH = 0x480000
HT = 0xA00000
H  = 0xC00000
XB = 0xE00000
HM = 0x1000000
X1 = 0x1200000
G  = 0x1400000
CS1 = 0x1C00000
CS3 = 0x1C04000
ST4 = 0x1C20000
```

```python
import sys, struct
sys.path.insert(0, "dev")
from asmlib import Asm, fix_hazards, stamp, flush_stamps, STAMPS
import layout as LY

NAME = "sequential_preLN__ssm_conv_s4__mixer_s_mlp__prompt"
def f2u(f): return struct.unpack("<I", struct.pack("<f", f))[0]
def hx(f): return "0x%08x" % f2u(f)
L2E = 1.4426950408889634
L2E_HI = struct.unpack("<f", struct.pack("<f", L2E))[0]
L2E_LO = L2E - L2E_HI

kernels = []

def add64(a, d, s, imm):
    a(f"s_add_u32 s{d}, s{s}, {imm}\ns_addc_u32 s{d+1}, s{s+1}, 0")

def wave_reduce_sum(a, regs):
    for m in ("row_shr:1 row_mask:0xf bank_mask:0xf", "row_shr:2 row_mask:0xf bank_mask:0xf", "row_shr:4 row_mask:0xf bank_mask:0xf",
              "row_shr:8 row_mask:0xf bank_mask:0xf", "row_bcast:15 row_mask:0xa bank_mask:0xf", "row_bcast:31 row_mask:0xc bank_mask:0xf"):
        for r in regs:
            a(f"v_add_f32_dpp v{r}, v{r}, v{r} {m}")

def rnd_bf16(a, d, s):
    a(f"v_cvt_pk_bf16_f32 v{d}, v{s}, v{s}\nv_lshlrev_b32 v{d}, 16, v{d}")

def gen_k1():
    a = Asm()
    RED = 0
    a(f"""
    s_cmp_ge_u32 s2, 256
    s_cbranch_scc1 K1_AUX
    s_load_dwordx2 s[16:17], s[0:1], 0
    s_load_dwordx2 s[32:33], s[0:1], 128
    v_lshlrev_b32 v1, 2, v0
    v_add_u32 v2, 0x1000, v1
    v_mov_b32 v3, 0
    v_mov_b32 v4, 0x1000
    v_lshrrev_b32 v6, 6, v0
    v_readfirstlane_b32 s8, v6
    s_lshl_b32 s3, s2, 13
    s_waitcnt lgkmcnt(0)
    s_add_u32 s34, s16, s3
    s_addc_u32 s35, s17, 0
    """)
    stamp(a)
    for r in range(8):
        a(f"global_load_dword v{10+r}, v{1 if r < 4 else 2}, s[34:35] offset:{(r & 3) * 1024}")
    for r in range(8):
        a(f"global_load_ushort v{20+r}, v{3 if r < 4 else 4}, s[34:35] offset:{(r & 3) * 1024}")
    UB = LY.UROW * 2
    add64(a, 36, 32, LY.UT); add64(a, 38, 32, LY.XT)
    a(f"""
    v_and_b32 v1, 15, v0
    v_bfe_u32 v2, v0, 4, 1
    v_lshlrev_b32 v3, 4, v1
    v_add_u32 v4, 0x1000, v3
    v_cmp_gt_u32 vcc, 4, v1
    v_cndmask_b32 v3, v4, v3, vcc
    s_lshl_b32 s3, s2, 1
    v_add_u32 v2, s3, v2
    v_mul_u32_u24 v2, {UB}, v2
    v_add_u32 v3, v2, v3
    v_mov_b32 v28, 0
    v_mov_b32 v29, 0
    v_mov_b32 v30, 0
    v_mov_b32 v31, 0
    v_cmp_gt_u32 vcc, 32, v0
    s_and_saveexec_b64 s[42:43], vcc
    global_store_dwordx4 v3, v[28:31], s[36:37]
    s_mov_b64 exec, s[42:43]
    s_lshl_b32 s3, s2, 4
    v_mul_u32_u24 v1, {2*UB}, v0
    v_add_u32 v1, s3, v1
    v_add_u32 v2, {UB}, v1
    v_lshlrev_b32 v3, 13, v0
    v_add_u32 v3, s3, v3
    v_add_u32 v4, 0x1000, v3
    s_mov_b32 s13, 0x05040100
    s_mov_b32 s14, 0x07060302
    s_mov_b32 s11, {hx(1.0/512)}
    s_mov_b32 s12, {hx(1e-5)}
    s_lshl_b32 s10, s8, 6
    v_mov_b32 v9, s10
    s_waitcnt vmcnt(1)
    """)
    stamp(a)
    for q in range(4):
        a(f"v_perm_b32 v{124+q}, v{11+2*q}, v{10+2*q}, s13")
        a(f"v_perm_b32 v{128+q}, v{11+2*q}, v{10+2*q}, s14")
    a("global_store_dwordx4 v3, v[124:127], s[38:39]\nglobal_store_dwordx4 v4, v[128:131], s[38:39]")
    for r in range(8):
        a(f"""
        v_lshlrev_b32 v{20+r}, 16, v{20+r}
        v_lshlrev_b32 v{70+2*r}, 16, v{10+r}
        v_and_b32 v{71+2*r}, 0xffff0000, v{10+r}
        """)
    for r in range(8):
        a(f"""
        v_sub_f32 v98, v{70+2*r}, v{20+r}
        v_sub_f32 v99, v{71+2*r}, v{20+r}
        v_add_f32 v{90+r}, v98, v99
        v_mul_f32 v{100+r}, v98, v98
        v_fmac_f32 v{100+r}, v99, v99
        """)
    wave_reduce_sum(a, list(range(90, 98)) + list(range(100, 108)))
    a(f"""
    s_mov_b32 exec_lo, 0
    s_mov_b32 exec_hi, 0x80000000
    ds_write_b128 v9, v[90:93] offset:{RED}
    ds_write_b128 v9, v[94:97] offset:{RED + 16}
    ds_write_b128 v9, v[100:103] offset:{RED + 32}
    ds_write_b128 v9, v[104:107] offset:{RED + 48}
    s_mov_b64 exec, -1
    v_mov_b32 v9, 0
    s_waitcnt lgkmcnt(0)
    s_barrier
    """)
    for w in range(4):
        for hh in range(4):
            a(f"ds_read_b128 v[{132+16*w+4*hh}:{135+16*w+4*hh}], v9 offset:{RED + 64*w + 16*hh}")
    a("s_waitcnt lgkmcnt(0)")
    for r in range(16):
        a(f"v_add_f32 v{132+r}, v{132+r}, v{148+r}\nv_add_f32 v{164+r}, v{164+r}, v{180+r}")
    for r in range(16):
        a(f"v_add_f32 v{132+r}, v{132+r}, v{164+r}")
    for r in range(8):
        a(f"""
        v_mul_f32 v{132+r}, s11, v{132+r}
        v_mul_f32 v{100+r}, s11, v{140+r}
        v_fma_f32 v{100+r}, -v{132+r}, v{132+r}, v{100+r}
        v_max_f32 v{100+r}, 0, v{100+r}
        v_add_f32 v{140+r}, v{20+r}, v{132+r}
        """)
        rnd_bf16(a, 100 + r, 100 + r)
        a(f"v_add_f32 v{100+r}, s12, v{100+r}")
        rnd_bf16(a, 100 + r, 100 + r)
        a(f"v_sqrt_f32 v{100+r}, v{100+r}")
        rnd_bf16(a, 100 + r, 100 + r)
        a(f"v_rcp_f32 v{108+r}, v{100+r}")
        rnd_bf16(a, 140 + r, 140 + r)
    for r in range(8):
        for e in range(2):
            x = 70 + 2 * r + e
            a(f"v_sub_f32 v{x}, v{x}, v{140+r}")
            rnd_bf16(a, x, x)
            a(f"""
            v_mul_f32 v98, v{x}, v{108+r}
            v_fma_f32 v99, -v98, v{100+r}, v{x}
            v_fma_f32 v{x}, v99, v{108+r}, v98
            """)
    for q in range(4):
        a(f"v_cvt_pk_bf16_f32 v{116+q}, v{70+4*q}, v{72+4*q}")
        a(f"v_cvt_pk_bf16_f32 v{120+q}, v{71+4*q}, v{73+4*q}")
    a(f"""
    global_store_dwordx4 v1, v[116:119], s[36:37] offset:64
    global_store_dwordx4 v2, v[120:123], s[36:37] offset:64
    """)
    flush_stamps(a, 1)
    a("s_endpgm")
    a(f"""
    K1_AUX:
    s_cmp_ge_u32 s2, 512
    s_cbranch_scc1 K1_END
    s_load_dwordx8 s[16:23], s[0:1], 80
    s_load_dwordx2 s[32:33], s[0:1], 128
    s_sub_u32 s3, s2, 256
    s_cmp_ge_u32 s3, 36
    s_cbranch_scc1 K1_PF
    v_lshrrev_b32 v1, 3, v0
    v_and_b32 v2, 7, v0
    s_cmp_lt_u32 s3, 8
    s_mov_b32 s4, 1024
    s_mov_b32 s6, {LY.CS1}
    s_cselect_b32 s4, s4, 3584
    s_cselect_b32 s5, 0, 8
    s_cselect_b32 s6, s6, {LY.CS3}
    s_waitcnt lgkmcnt(0)
    s_cselect_b32 s24, s16, s20
    s_cselect_b32 s25, s17, s21
    s_sub_u32 s3, s3, s5
    v_mul_lo_u32 v1, v1, s4
    v_lshl_add_u32 v1, v2, 4, v1
    s_lshl_b32 s7, s3, 7
    v_add_u32 v1, s7, v1
    s_lshl_b32 s4, s4, 5
    """)
    for j in range(16):
        a(f"global_load_dwordx4 v[{16+4*j}:{19+4*j}], v1, s[24:25]")
        if j < 15: a("v_add_u32 v1, s4, v1")
    for r in range(8): a(f"v_mov_b32 v{4+r}, 0")
    for j in range(16):
        a(f"s_waitcnt vmcnt({15-j})")
        for q in range(4):
            a(f"""
            v_lshlrev_b32 v12, 16, v{16+4*j+q}
            v_and_b32 v13, 0xffff0000, v{16+4*j+q}
            v_add_f32 v{4+2*q}, v{4+2*q}, v12
            v_add_f32 v{5+2*q}, v{5+2*q}, v13
            """)
    a(f"""
    v_lshlrev_b32 v1, 5, v0
    ds_write_b128 v1, v[4:7]
    ds_write_b128 v1, v[8:11] offset:16
    s_waitcnt lgkmcnt(0)
    s_barrier
    v_cmp_gt_u32 vcc, 64, v0
    s_and_saveexec_b64 s[42:43], vcc
    s_cbranch_execz K1_END
    v_lshlrev_b32 v1, 2, v0
    """)
    for j in range(32):
        a(f"ds_read_b32 v{16+j}, v1 offset:{256*j}")
    a("s_waitcnt lgkmcnt(0)")
    for st in (16, 8, 4, 2, 1):
        for j in range(st): a(f"v_add_f32 v{16+j}, v{16+j}, v{16+j+st}")
    a(f"""
    s_lshl_b32 s7, s3, 8
    s_add_u32 s6, s6, s7
    v_add_u32 v1, s6, v1
    global_store_dword v1, v16, s[32:33]
    s_endpgm
    K1_PF:
    s_sub_u32 s3, s3, 36
    s_waitcnt lgkmcnt(0)
    s_mov_b32 s24, s18
    s_mov_b32 s25, s19
    s_mov_b32 s26, {512*1024}
    s_mov_b32 s27, 0x00020000
    s_mov_b32 s28, s22
    s_mov_b32 s29, s23
    s_mov_b32 s30, {1792*1024}
    s_mov_b32 s31, 0x00020000
    s_mul_i32 s4, s3, 4096
    v_lshlrev_b32 v1, 4, v0
    v_add_u32 v1, s4, v1
    buffer_load_dwordx4 v[4:7], v1, s[24:27], 0 offen
    s_mul_i32 s4, s3, 12288
    v_lshlrev_b32 v1, 4, v0
    v_add_u32 v1, s4, v1
    v_add_u32 v2, 0x1000, v1
    v_add_u32 v3, 0x2000, v1
    buffer_load_dwordx4 v[8:11], v1, s[28:31], 0 offen
    buffer_load_dwordx4 v[12:15], v2, s[28:31], 0 offen
    buffer_load_dwordx4 v[16:19], v3, s[28:31], 0 offen
    s_waitcnt vmcnt(0)
    K1_END:
    s_endpgm
    """)
    kernels.append(("k1_kernel", 512, 256, 8192, a.lines, 200, 48))

def emit(kernels):
    out = []
    hdr = open(f"cdna_kernels/{NAME}.s.ref").read().split("\n")
    for ln in hdr:
        if ln.startswith("; @launch") or not ln.startswith(";"):
            break
        if "Override launch geometry" in ln or "grid=ceil" in ln: continue
        out.append(ln)
    kernels = [k if len(k) == 8 else k + (0,) for k in kernels]
    for (lab, grid, block, lds, lines, nv, ns, na) in kernels:
        out.append(f"; @launch kernel={lab} grid=({grid},1,1) block=({block},1,1) lds={lds}")
    out.append('.amdgcn_target "amdgcn-amd-amdhsa--gfx950"')
    out.append(".text")
    for (lab, grid, block, lds, lines, nv, ns, na) in kernels:
        out += [f".globl {lab}", ".p2align 8", f".type {lab},@function", f"{lab}:"]
        out += fix_hazards(lines)
    out.append('.section .rodata,"a"')
    for (lab, grid, block, lds, lines, nv, ns, na) in kernels:
        acc = (nv + 3) // 4 * 4
        out += [".p2align 6", f".amdhsa_kernel {lab}", f"  .amdhsa_next_free_vgpr {acc + na if na else nv}", f"  .amdhsa_next_free_sgpr {100 if STAMPS else ns}",
                f"  .amdhsa_accum_offset {acc}", "  .amdhsa_group_segment_fixed_size 0", "  .amdhsa_kernarg_size 136",
                "  .amdhsa_user_sgpr_count 2", "  .amdhsa_user_sgpr_kernarg_segment_ptr 1", "  .amdhsa_system_sgpr_workgroup_id_x 1",
                ".end_amdhsa_kernel"]
    return "\n".join(out) + "\n"

if __name__ == "__main__":
    gen_k1()
    import gen2
    gen2.gen_all(kernels)
    import gen3
    gen3.gen_all(kernels)
    dst = sys.argv[1] if len(sys.argv) > 1 else f"cdna_kernels/{NAME}.s"
    open(dst, "w").write(emit(kernels))
    print("wrote", dst)
```

```python
import sys, struct
from asmlib import Asm, stamp, flush_stamps
import layout as LY
from gen2 import f2u, hx, add64, rnd_bf16
L2E = 1.4426950408889634
GK0 = -2 * L2E * 0.7978845608028654
GK1 = GK0 * 0.044715

def srd(a, d, base, off, nbytes):
    a(f"""
    s_add_u32 s{d}, s{base}, {off}
    s_addc_u32 s{d+1}, s{base+1}, 0
    s_mov_b32 s{d+2}, {nbytes}
    s_mov_b32 s{d+3}, 0x00020000
    """)

def lane_consts(a):
    a("""
    v_lshrrev_b32 v1, 6, v0
    v_readfirstlane_b32 s8, v1
    v_and_b32 v2, 63, v0
    v_and_b32 v9, 15, v0
    v_bfe_u32 v10, v0, 4, 2
    """)

def dma_voff128(a, vd, ld, vt):
    a(f"""
    v_lshrrev_b32 v{vd}, 3, v2
    v_bfe_u32 v{vt}, v2, 4, 1
    v_lshlrev_b32 v{vt}, 1, v{vt}
    s_and_b32 s3, s8, 1
    s_lshl_b32 s3, s3, 2
    v_or_b32 v{vt}, s3, v{vt}
    v_and_b32 v1, 7, v2
    v_xor_b32 v{vt}, v1, v{vt}
    v_mul_u32_u24 v{vd}, {ld}, v{vd}
    v_lshl_add_u32 v{vd}, v{vt}, 4, v{vd}
    """)

NW = 8
class Dma:
    def __init__(self, a, voff, srdr, rows, ld, sso, soff0):
        self.a, self.voff, self.srdr, self.rows, self.ld, self.sso = a, voff, srdr, rows, ld, sso
        a(f"s_mul_i32 s{sso}, s8, {rows*ld}\ns_lshl_b32 s{sso+1}, s8, 10")
        if soff0 is not None: a(f"s_add_u32 s{sso}, s{sso}, s{soff0}")
    def issue(self, n, ldsbase, voffs=None):
        a = self.a
        for j in range(n):
            vo = self.voff if voffs is None else voffs[j % len(voffs)]
            a(f"s_add_u32 m0, s{self.sso+1}, {ldsbase + 1024*NW*j}")
            a(f"buffer_load_dwordx4 v{vo}, s[{self.srdr}:{self.srdr+3}], s{self.sso} offen lds")
            a(f"s_add_u32 s{self.sso}, s{self.sso}, {NW*self.rows*self.ld}")

def tr_base128(a, vd, chunk2_expr_imm, ldsbase, vt1, vt2, wave_chunk=False):
    a(f"""
    v_bfe_u32 v{vt1}, v9, 3, 1
    v_lshlrev_b32 v{vt1}, 1, v{vt1}
    v_and_b32 v{vt2}, 1, v10
    v_lshl_or_b32 v{vt1}, v{vt2}, 2, v{vt1}
    v_bfe_u32 v{vt2}, v9, 1, 1
    """)
    if wave_chunk:
        a(f"v_add_u32 v{vt2}, s{wave_chunk}, v{vt2}")
    else:
        a(f"v_add_u32 v{vt2}, {chunk2_expr_imm}, v{vt2}")
    a(f"""
    v_xor_b32 v{vt1}, v{vt1}, v{vt2}
    v_lshlrev_b32 v{vt1}, 4, v{vt1}
    v_and_b32 v{vt2}, 1, v9
    v_lshl_add_u32 v{vt1}, v{vt2}, 3, v{vt1}
    v_lshrrev_b32 v{vt2}, 2, v9
    v_lshl_add_u32 v{vt2}, v10, 3, v{vt2}
    v_lshl_add_u32 v{vd}, v{vt2}, 7, v{vt1}
    v_add_u32 v{vd}, {ldsbase}, v{vd}
    """)

def xor_reduce(a, r, t):
    a(f"""
    v_mov_b32 v{t}, v{r}
    v_permlane32_swap_b32 v{r}, v{t}
    v_add_f32 v{r}, v{r}, v{t}
    v_mov_b32 v{t}, v{r}
    v_permlane16_swap_b32 v{r}, v{t}
    v_add_f32 v{r}, v{r}, v{t}
    """)

def consts(a):
    a(f"""
    s_mov_b32 s20, 0x3f803f80
    s_mov_b32 s21, {hx(1.0/512)}
    s_mov_b32 s22, {hx(1e-5)}
    s_mov_b32 s23, 0xffff0000
    s_mov_b32 s24, {hx(GK0)}
    s_mov_b32 s25, {hx(GK1)}
    """)

def den_from_var(a, v):
    rnd_bf16(a, v, v)
    a(f"v_add_f32 v{v}, s22, v{v}")
    rnd_bf16(a, v, v)
    a(f"v_sqrt_f32 v{v}, v{v}")
    rnd_bf16(a, v, v)

def gelu4(a, x, t, out):
    a(f"""
    v_cvt_pk_bf16_f32 v{t}, v{x}, v{x+1}
    v_cvt_pk_bf16_f32 v{t+1}, v{x+2}, v{x+3}
    v_lshlrev_b32 v{x}, 16, v{t}
    v_and_b32 v{x+1}, s23, v{t}
    v_lshlrev_b32 v{x+2}, 16, v{t+1}
    v_and_b32 v{x+3}, s23, v{t+1}
    v_pk_mul_f32 v[{t}:{t+1}], v[{x}:{x+1}], v[{x}:{x+1}]
    v_pk_mul_f32 v[{t+2}:{t+3}], v[{x+2}:{x+3}], v[{x+2}:{x+3}]
    v_pk_fma_f32 v[{t}:{t+1}], v[{t}:{t+1}], s[26:27], v[30:31]
    v_pk_fma_f32 v[{t+2}:{t+3}], v[{t+2}:{t+3}], s[26:27], v[30:31]
    v_pk_mul_f32 v[{t}:{t+1}], v[{t}:{t+1}], v[{x}:{x+1}]
    v_pk_mul_f32 v[{t+2}:{t+3}], v[{t+2}:{t+3}], v[{x+2}:{x+3}]
    v_exp_f32 v{t}, v{t}
    v_exp_f32 v{t+1}, v{t+1}
    v_exp_f32 v{t+2}, v{t+2}
    v_exp_f32 v{t+3}, v{t+3}
    v_add_f32 v{t}, 1.0, v{t}
    v_add_f32 v{t+1}, 1.0, v{t+1}
    v_add_f32 v{t+2}, 1.0, v{t+2}
    v_add_f32 v{t+3}, 1.0, v{t+3}
    v_rcp_f32 v{t}, v{t}
    v_rcp_f32 v{t+1}, v{t+1}
    v_rcp_f32 v{t+2}, v{t+2}
    v_rcp_f32 v{t+3}, v{t+3}
    v_pk_mul_f32 v[{x}:{x+1}], v[{x}:{x+1}], v[{t}:{t+1}]
    v_pk_mul_f32 v[{x+2}:{x+3}], v[{x+2}:{x+3}], v[{t+2}:{t+3}]
    v_cvt_pk_bf16_f32 v{out}, v{x}, v{x+1}
    v_cvt_pk_bf16_f32 v{out+1}, v{x+2}, v{x+3}
    """)

def gelu_consts(a):
    a("s_mov_b32 s26, s25\ns_mov_b32 s27, s25\nv_mov_b32 v30, s24\nv_mov_b32 v31, s24")

def ln_correct(a, x, cs, nm, sc):
    a(f"""
    v_pk_fma_f32 v[{x}:{x+1}], v[{cs}:{cs+1}], v[{nm}:{nm+1}], v[{x}:{x+1}]
    v_pk_fma_f32 v[{x+2}:{x+3}], v[{cs+2}:{cs+3}], v[{nm}:{nm+1}], v[{x+2}:{x+3}]
    v_pk_mul_f32 v[{x}:{x+1}], v[{x}:{x+1}], v[{sc}:{sc+1}]
    v_pk_mul_f32 v[{x+2}:{x+3}], v[{x+2}:{x+3}], v[{sc}:{sc+1}]
    """)

def tile_map_32x8(a):
    a("""
    s_and_b32 s4, s2, 7
    s_lshl_b32 s4, s4, 2
    s_lshr_b32 s5, s2, 6
    s_add_u32 s4, s4, s5
    s_bfe_u32 s5, s2, 0x30003
    """)

def sum_partials(a, dst, n, vaddr, sbase, stride, nparts, tmp):
    pass


def cs_reduce(a, regs):
    for m in ("quad_perm:[1,0,3,2] row_mask:0xf bank_mask:0xf", "quad_perm:[2,3,0,1] row_mask:0xf bank_mask:0xf", "row_half_mirror row_mask:0xf bank_mask:0xf"):
        for r in regs: a(f"v_add_f32_dpp v{r}, v{r}, v{r} {m}")

def wave_split(a):
    a("s_lshr_b32 s9, s8, 1\ns_and_b32 s10, s8, 1")

def gen_k3(kernels):
    a = Asm()
    HTL, WL = 0, 65536
    a("""
    s_cmp_ge_u32 s2, 256
    s_cbranch_scc1 K3_END
    s_load_dwordx2 s[16:17], s[0:1], 80
    s_load_dwordx2 s[32:33], s[0:1], 128
    """)
    lane_consts(a); tile_map_32x8(a)
    dma_voff128(a, 3, 4096, 5)
    dma_voff128(a, 4, 1024, 5)
    a("s_lshl_b32 s6, s4, 7\ns_lshl_b32 s7, s5, 7")
    dh = Dma(a, 3, 36, 8, 4096, 28, 6)
    dw = Dma(a, 4, 40, 8, 1024, 30, 7)
    a("s_waitcnt lgkmcnt(0)")
    stamp(a)
    srd(a, 36, 32, LY.HT, 512 * 4096)
    srd(a, 40, 16, 0, 512 * 1024)
    for ch in range(4):
        dh.issue(2, HTL + 16384 * ch)
        dw.issue(2, WL + 16384 * ch)
    add64(a, 44, 32, LY.H); add64(a, 46, 32, LY.XB); add64(a, 48, 32, LY.HM); add64(a, 50, 32, LY.CS1)
    consts(a); wave_split(a)
    CSR = 160
    a("""
    s_lshl_b32 s7, s5, 8
    s_lshl_b32 s3, s10, 7
    s_add_u32 s7, s7, s3
    v_and_b32 v6, 7, v9
    v_lshlrev_b32 v6, 11, v6
    v_lshl_add_u32 v6, v10, 4, v6
    v_add_u32 v6, s7, v6
    """)
    for c in range(2):
        a(f"global_load_dwordx4 v[{CSR+4*c}:{CSR+4*c+3}], v6, s[50:51] offset:{64*c}")
    a("s_lshl_b32 s11, s9, 1\ns_lshl_b32 s12, s10, 2\ns_add_u32 s13, s12, 2")
    tr_base128(a, 11, 0, HTL, 5, 6, wave_chunk=11)
    tr_base128(a, 12, 0, WL, 5, 6, wave_chunk=12)
    tr_base128(a, 13, 0, WL, 5, 6, wave_chunk=13)
    a("""
    s_lshl_b32 s6, s4, 6
    s_lshl_b32 s7, s9, 4
    s_add_u32 s6, s6, s7
    v_add_u32 v7, s6, v9
    v_lshlrev_b32 v7, 10, v7
    v_lshl_add_u32 v8, v10, 4, v7
    s_lshl_b32 s7, s5, 7
    s_lshl_b32 s3, s10, 6
    s_add_u32 s7, s7, s3
    v_lshl_add_u32 v7, v10, 3, v7
    v_add_u32 v7, s7, v7
    """)
    gelu_consts(a)
    HV, T, ACC, WF = 32, 96, 112, 128
    for r in range(8): a(f"v_mov_b32 v{ACC+r}, 0")
    for r in range(4): a(f"v_mov_b32 v{T+r}, 0")
    for ch in range(4):
        a(f"s_waitcnt vmcnt({2 + 4*(3-ch)})\ns_barrier")
        if ch == 0: stamp(a)
        for s in range(4 * ch, 4 * ch + 4):
            for h in range(2):
                a(f"ds_read_b64_tr_b16 v[{HV+4*s+2*h}:{HV+4*s+2*h+1}], v11 offset:{(32*s+4*h)*128}")
            b = WF + 8 * (s & 3)
            for c in range(2):
                for h in range(2):
                    a(f"ds_read_b64_tr_b16 v[{b+4*c+2*h}:{b+4*c+2*h+1}], v{12+c} offset:{(32*s+4*h)*128}")
        for k, s in enumerate(range(4 * ch, 4 * ch + 4)):
            a(f"s_waitcnt lgkmcnt({min(15, 6*(3-k))})")
            b = WF + 8 * (s & 3)
            for c in range(2):
                a(f"v_mfma_f32_16x16x32_bf16 v[{ACC+4*c}:{ACC+4*c+3}], v[{b+4*c}:{b+4*c+3}], v[{HV+4*s}:{HV+4*s+3}], v[{ACC+4*c}:{ACC+4*c+3}]")
                for i in (4 * s + 2 * c, 4 * s + 2 * c + 1):
                    a(f"v_dot2_f32_bf16 v{T+(i&1)}, v{HV+i}, s20, v{T+(i&1)}")
                    a(f"v_dot2_f32_bf16 v{T+2+(i&1)}, v{HV+i}, v{HV+i}, v{T+2+(i&1)}")
    stamp(a)
    a(f"v_add_f32 v{T}, v{T}, v{T+1}\nv_add_f32 v{T+2}, v{T+2}, v{T+3}")
    xor_reduce(a, T, T + 1); xor_reduce(a, T + 2, T + 3)
    M, VAR, MB, DEN, RC = T, T + 2, T + 4, T + 6, T + 8
    a(f"""
    v_mul_f32 v{M}, s21, v{M}
    v_mul_f32 v{VAR}, s21, v{VAR}
    v_fma_f32 v{VAR}, -v{M}, v{M}, v{VAR}
    v_max_f32 v{VAR}, 0, v{VAR}
    v_mov_b32 v{DEN}, v{VAR}
    """)
    den_from_var(a, DEN)
    rnd_bf16(a, MB, M)
    a(f"""
    v_rcp_f32 v{RC}, v{DEN}
    v_sub_f32 v{M}, v{M}, v{MB}
    v_mul_f32 v{M}, v{M}, v{RC}
    v_mul_f32 v{VAR}, v{VAR}, v{RC}
    v_mul_f32 v{VAR}, v{VAR}, v{RC}
    """)
    rnd_bf16(a, M, M)
    den_from_var(a, VAR)
    a(f"""
    v_fma_f32 v{M}, v{M}, v{DEN}, v{MB}
    v_sub_f32 v{M}, 0, v{M}
    v_mov_b32 v{M+1}, v{M}
    v_mul_f32 v{VAR}, v{VAR}, v{DEN}
    v_rcp_f32 v{VAR}, v{VAR}
    v_sub_f32 v{MB}, 0, v{MB}
    v_mov_b32 v{MB+1}, v{MB}
    v_mov_b32 v{RC+1}, v{RC}
    v_mov_b32 v{VAR+1}, v{VAR}
    s_waitcnt vmcnt(0)
    """)
    cs_reduce(a, range(CSR, CSR + 8))
    a("s_lshl_b32 s3, s5, 1\ns_add_u32 s3, s3, s10")
    for s in range(16):
        a(f"s_cmp_lg_u32 s3, {s}\ns_cbranch_scc1 K3_S{s}")
        for k in range(4):
            src = HV + 4 * s + k; t = T + 10
            a(f"""
            v_lshlrev_b32 v{t}, 16, v{src}
            v_and_b32 v{t+1}, s23, v{src}
            v_pk_add_f32 v[{t}:{t+1}], v[{t}:{t+1}], v[{MB}:{MB+1}]
            v_cvt_pk_bf16_f32 v{t+2}, v{t}, v{t+1}
            v_lshlrev_b32 v{t}, 16, v{t+2}
            v_and_b32 v{t+1}, s23, v{t+2}
            v_pk_mul_f32 v[{t}:{t+1}], v[{t}:{t+1}], v[{RC}:{RC+1}]
            v_cvt_pk_bf16_f32 v{WF+k}, v{t}, v{t+1}
            """)
        a(f"global_store_dwordx4 v8, v[{HV+4*s}:{HV+4*s+3}], s[44:45] offset:{64*s}")
        a(f"global_store_dwordx4 v8, v[{WF}:{WF+3}], s[46:47] offset:{64*s}")
        a(f"s_branch K3_SD\nK3_S{s}:")
    a("K3_SD:\ns_nop 1")
    for c in range(2):
        ln_correct(a, ACC + 4 * c, CSR + 4 * c, M, VAR)
        gelu4(a, ACC + 4 * c, WF + 16 + 8 * c, WF + 8 + 2 * c)
        a(f"global_store_dwordx2 v7, v[{WF+8+2*c}:{WF+9+2*c}], s[48:49] offset:{32*c}")
    flush_stamps(a, 3)
    a("K3_END:\ns_endpgm")
    kernels.append(("k3_kernel", 256, 512, 131072, a.lines, 168, 56))

def gen_k4(kernels):
    a = Asm()
    WL, AL = 0, 65536
    a("""
    s_cmp_ge_u32 s2, 256
    s_cbranch_scc1 K4_END
    s_load_dwordx2 s[16:17], s[0:1], 88
    s_load_dwordx2 s[32:33], s[0:1], 128
    """)
    lane_consts(a); tile_map_32x8(a)
    dma_voff128(a, 4, 1024, 5)
    for jj in range(2):
        a(f"s_add_u32 s3, s8, {8*jj}\nv_xor_b32 v5, s3, v2\nv_lshlrev_b32 v{16+jj}, 4, v5")
    a("""
    s_lshl_b32 s7, s5, 7
    s_lshl_b32 s6, s4, 16
    s_sub_u32 s6, s6, 0x800
    """)
    da = Dma(a, None, 36, 1, 1024, 28, 6)
    dw = Dma(a, 4, 40, 8, 1024, 30, 7)
    a("s_waitcnt lgkmcnt(0)")
    stamp(a)
    srd(a, 36, 32, LY.HM, 2048 * 1024)
    srd(a, 40, 16, 0, 512 * 1024)
    da.issue(9, AL, voffs=[16, 17])
    dw.issue(8, WL)
    add64(a, 46, 32, LY.XB); add64(a, 48, 32, LY.X1); add64(a, 50, 32, LY.ST4)
    consts(a); wave_split(a)
    a("""
    s_lshl_b32 s6, s4, 6
    s_lshl_b32 s7, s9, 4
    s_add_u32 s6, s6, s7
    v_add_u32 v6, s6, v9
    v_lshlrev_b32 v7, 10, v6
    s_lshl_b32 s7, s5, 7
    s_lshl_b32 s3, s10, 6
    s_add_u32 s7, s7, s3
    v_lshl_add_u32 v7, v10, 3, v7
    v_add_u32 v7, s7, v7
    v_lshlrev_b32 v6, 7, v6
    s_lshr_b32 s7, s7, 3
    v_add_u32 v6, s7, v6
    """)
    AF, ACC, WF, XR = 32, 96, 112, 144
    for c in range(2):
        a(f"global_load_dwordx2 v[{XR+2*c}:{XR+2*c+1}], v7, s[46:47] offset:{32*c}")
    a("s_lshl_b32 s12, s10, 2\ns_add_u32 s13, s12, 2")
    tr_base128(a, 12, 0, WL, 5, 3, wave_chunk=12)
    tr_base128(a, 13, 0, WL, 5, 3, wave_chunk=13)
    for kb, sh in enumerate((-1, 1, -2, 2)):
        a(f"""
        s_lshl_b32 s3, s9, 4
        s_add_u32 s3, s3, {2 + sh}
        v_add_u32 v5, s3, v9
        v_and_b32 v3, 15, v5
        v_xor_b32 v3, v10, v3
        v_lshlrev_b32 v3, 4, v3
        v_lshl_add_u32 v{20+kb}, v5, 10, v3
        v_add_u32 v{20+kb}, {AL + 256*kb}, v{20+kb}
        """)
    for r in range(8): a(f"v_mov_b32 v{ACC+r}, 0")
    a("s_waitcnt vmcnt(2)\ns_barrier")
    stamp(a)
    def rd(s):
        if s & 3: a(f"v_xor_b32 v24, {64*(s&3)}, v{20+(s>>2)}")
        a(f"ds_read_b128 v[{AF+4*s}:{AF+4*s+3}], v{24 if s & 3 else 20+(s>>2)}")
        b = WF + 8 * (s & 3)
        for c in range(2):
            for h in range(2):
                a(f"ds_read_b64_tr_b16 v[{b+4*c+2*h}:{b+4*c+2*h+1}], v{12+c} offset:{(32*s+4*h)*128}")
    rd(0); rd(1)
    for s in range(16):
        if s + 2 < 16: rd(s + 2)
        a(f"s_waitcnt lgkmcnt({5*min(2, 15-s)})")
        b = WF + 8 * (s & 3)
        for c in range(2):
            a(f"v_mfma_f32_16x16x32_bf16 v[{ACC+4*c}:{ACC+4*c+3}], v[{b+4*c}:{b+4*c+3}], v[{AF+4*s}:{AF+4*s+3}], v[{ACC+4*c}:{ACC+4*c+3}]")
    stamp(a)
    a("s_waitcnt vmcnt(0)\nv_mov_b32 v24, 0\nv_mov_b32 v25, 0")
    for c in range(2):
        x = ACC + 4 * c
        a(f"""
        v_cvt_pk_bf16_f32 v26, v{x}, v{x+1}
        v_cvt_pk_bf16_f32 v27, v{x+2}, v{x+3}
        v_lshlrev_b32 v{x}, 16, v26
        v_and_b32 v{x+1}, s23, v26
        v_lshlrev_b32 v{x+2}, 16, v27
        v_and_b32 v{x+3}, s23, v27
        v_lshlrev_b32 v26, 16, v{XR+2*c}
        v_and_b32 v27, s23, v{XR+2*c}
        v_lshlrev_b32 v28, 16, v{XR+2*c+1}
        v_and_b32 v29, s23, v{XR+2*c+1}
        v_pk_add_f32 v[{x}:{x+1}], v[{x}:{x+1}], v[26:27]
        v_pk_add_f32 v[{x+2}:{x+3}], v[{x+2}:{x+3}], v[28:29]
        v_cvt_pk_bf16_f32 v{WF+2*c}, v{x}, v{x+1}
        v_cvt_pk_bf16_f32 v{WF+2*c+1}, v{x+2}, v{x+3}
        global_store_dwordx2 v7, v[{WF+2*c}:{WF+2*c+1}], s[48:49] offset:{32*c}
        """)
        for k in range(2):
            a(f"v_dot2_f32_bf16 v24, v{WF+2*c+k}, s20, v24\nv_dot2_f32_bf16 v25, v{WF+2*c+k}, v{WF+2*c+k}, v25")
    xor_reduce(a, 24, 26); xor_reduce(a, 25, 26)
    a("""
    v_cmp_gt_u32 vcc, 16, v2
    s_and_saveexec_b64 s[42:43], vcc
    global_store_dwordx2 v6, v[24:25], s[50:51]
    s_mov_b64 exec, s[42:43]
    """)
    flush_stamps(a, 4)
    a("K4_END:\ns_endpgm")
    kernels.append(("k4_kernel", 256, 512, 65536 + 72 * 1024, a.lines, 152, 56))

def gen_k5(kernels):
    a = Asm()
    a("""
    s_cmp_ge_u32 s2, 256
    s_cbranch_scc1 K5_END
    s_load_dwordx2 s[16:17], s[0:1], 96
    s_load_dwordx2 s[32:33], s[0:1], 128
    """)
    lane_consts(a)
    a(f"""
    s_and_b32 s4, s2, 7
    s_lshl_b32 s4, s4, 1
    s_lshr_b32 s5, s2, 7
    s_add_u32 s4, s4, s5
    s_bfe_u32 s5, s2, 0x40003
    s_bfe_u32 s3, s8, 0x10001
    s_lshl_b32 s3, s3, 3
    v_lshlrev_b32 v5, 1, v10
    v_or_b32 v5, s3, v5
    v_xor_b32 v5, v9, v5
    v_mul_u32_u24 v4, 3584, v10
    v_lshl_add_u32 v4, v5, 4, v4
    v_cmp_gt_u32 s[52:53], 14, v5
    s_and_b32 s3, s8, 3
    s_lshl_b32 s3, s3, 2
    v_add_u32 v5, s3, v10
    v_xor_b32 v5, v9, v5
    v_lshlrev_b32 v3, 10, v10
    v_lshl_add_u32 v3, v5, 4, v3
    s_mul_i32 s7, s5, 224
    s_lshl_b32 s6, s4, 17
    """)
    dw = Dma(a, 4, 40, 4, 3584, 30, 7)
    a("s_mul_i32 s28, s8, 4096\ns_add_u32 s28, s28, s6\ns_lshl_b32 s29, s8, 10\ns_waitcnt lgkmcnt(0)")
    stamp(a)
    srd(a, 36, 32, LY.X1, 2048 * 1024)
    srd(a, 40, 16, 0, 512 * 3584)
    def issue(st):
        buf = 65536 * (st & 1)
        for j in range(4):
            a(f"s_add_u32 m0, s29, {buf + 8192*j}")
            a(f"s_add_u32 s3, s28, {32768*j + 256*st}")
            a(f"buffer_load_dwordx4 v3, s[36:39], s3 offen lds")
        a("s_mov_b64 exec, s[52:53]")
        dw.issue(4, buf + 32768)
        a("s_mov_b64 exec, -1")
    issue(0); issue(1)
    add64(a, 46, 32, LY.ST4); add64(a, 48, 32, LY.G); add64(a, 50, 32, LY.CS3)
    consts(a)
    AFR, T, ACC, WF, CSR, STR = 32, 40, 56, 84, 116, 144
    a("""
    s_lshl_b32 s6, s4, 7
    s_lshl_b32 s7, s8, 4
    s_add_u32 s6, s6, s7
    v_add_u32 v7, s6, v9
    v_lshlrev_b32 v8, 7, v7
    v_lshl_add_u32 v8, v10, 5, v8
    """)
    a(f"global_load_dwordx4 v[{STR}:{STR+3}], v8, s[46:47]\nglobal_load_dwordx4 v[{STR+4}:{STR+7}], v8, s[46:47] offset:16")
    a("""
    s_mul_i32 s7, s5, 448
    v_and_b32 v6, 7, v9
    v_mul_u32_u24 v6, 7168, v6
    v_lshl_add_u32 v6, v10, 4, v6
    v_add_u32 v6, s7, v6
    """)
    for c in range(7):
        a(f"global_load_dwordx4 v[{CSR+4*c}:{CSR+4*c+3}], v6, s[50:51] offset:{64*c}")
    a("""
    v_lshrrev_b32 v5, 2, v9
    v_lshlrev_b32 v6, 1, v5
    v_and_b32 v1, 1, v10
    v_lshl_or_b32 v6, v1, 3, v6
    v_lshl_add_u32 v5, v10, 3, v5
    v_lshlrev_b32 v5, 8, v5
    v_and_b32 v1, 1, v9
    v_lshl_add_u32 v5, v1, 3, v5
    v_add_u32 v5, 0x8000, v5
    v_bfe_u32 v1, v9, 1, 1
    """)
    for c in range(7):
        a(f"""
        v_add_u32 v{12+c}, {2*c}, v1
        v_xor_b32 v{12+c}, v{12+c}, v6
        v_lshl_add_u32 v{12+c}, v{12+c}, 4, v5
        """)
    a("""
    v_xor_b32 v5, v10, v9
    v_lshlrev_b32 v5, 4, v5
    s_lshl_b32 s3, s8, 12
    v_lshl_add_u32 v19, v9, 8, v5
    v_add_u32 v19, s3, v19
    """)
    for sp in range(1, 4): a(f"v_xor_b32 v{19+sp}, {64*sp}, v19")
    a("""
    v_mul_u32_u24 v7, 3584, v7
    v_lshl_add_u32 v7, v10, 3, v7
    s_mul_i32 s7, s5, 224
    v_add_u32 v7, s7, v7
    """)
    gelu_consts(a)
    for r in range(28): a(f"v_mov_b32 v{ACC+r}, 0")
    for st in range(4):
        later = {0: 8 + 9, 1: 9 + 8, 2: 8, 3: 0}[st]
        a(f"s_waitcnt vmcnt({later})\ns_barrier")
        stamp(a)
        seq = [(sp, c) for sp in range(4) for c in range(7)]
        def rd(i):
            sp, c = seq[i]; b = WF + 4 * (i % 8)
            if c == 0: a(f"ds_read_b128 v[{AFR+4*(sp&1)}:{AFR+4*(sp&1)+3}], v{19+sp}")
            for h in range(2):
                a(f"ds_read_b64_tr_b16 v[{b+2*h}:{b+2*h+1}], v{12+c} offset:{(32*sp+4*h)*256}")
        def cnt(i): return 2 + (1 if seq[i][1] == 0 else 0)
        D = 5
        for i in range(D): rd(i)
        for i, (sp, c) in enumerate(seq):
            if i + D < len(seq): rd(i + D)
            outstanding = sum(cnt(k) for k in range(i + 1, min(i + D + 1, len(seq))))
            a(f"s_waitcnt lgkmcnt({outstanding})")
            b = WF + 4 * (i % 8); af = AFR + 4 * (sp & 1)
            a(f"v_mfma_f32_16x16x32_bf16 v[{ACC+4*c}:{ACC+4*c+3}], v[{b}:{b+3}], v[{af}:{af+3}], v[{ACC+4*c}:{ACC+4*c+3}]")
        if st < 3:
            d = 65536 if (st & 1) == 0 else -65536
            for c in range(7): a(f"v_add_u32 v{12+c}, {d & 0xffffffff}, v{12+c}")
            for sp in range(4): a(f"v_add_u32 v{19+sp}, {d & 0xffffffff}, v{19+sp}")
        if st + 2 < 4:
            a("s_barrier")
            issue(st + 2)
        if st == 2:
            S = STR
            a(f"""
            v_add_f32 v{S}, v{S}, v{S+2}
            v_add_f32 v{S+1}, v{S+1}, v{S+3}
            v_add_f32 v{S+4}, v{S+4}, v{S+6}
            v_add_f32 v{S+5}, v{S+5}, v{S+7}
            v_add_f32 v{S}, v{S}, v{S+4}
            v_add_f32 v{S+1}, v{S+1}, v{S+5}
            """)
            xor_reduce(a, S, S + 2); xor_reduce(a, S + 1, S + 2)
            a(f"""
            v_mul_f32 v{S}, s21, v{S}
            v_mul_f32 v{S+2}, s21, v{S+1}
            v_fma_f32 v{S+2}, -v{S}, v{S}, v{S+2}
            v_max_f32 v{S+2}, 0, v{S+2}
            """)
            den_from_var(a, S + 2)
            rnd_bf16(a, S, S)
            a(f"""
            v_rcp_f32 v{S+2}, v{S+2}
            v_sub_f32 v{S}, 0, v{S}
            v_mov_b32 v{S+1}, v{S}
            v_mov_b32 v{S+3}, v{S+2}
            """)
            cs_reduce(a, range(CSR, CSR + 28))
    stamp(a)
    for c in range(7):
        x0 = ACC + 4 * c
        ln_correct(a, x0, CSR + 4 * c, STR, STR + 2)
        o = WF + 2 * (c & 3)
        gelu4(a, x0, T + 8 * (c & 1), o)
        a(f"global_store_dwordx2 v7, v[{o}:{o+1}], s[48:49] offset:{32*c}")
    flush_stamps(a, 5)
    a("K5_END:\ns_endpgm")
    kernels.append(("k5_kernel", 256, 512, 131072, a.lines, 152, 56))

def gen_k6(kernels):
    a = Asm()
    a("""
    s_cmp_ge_u32 s2, 256
    s_cbranch_scc1 K6_END
    s_load_dwordx4 s[16:19], s[0:1], 104
    s_load_dwordx2 s[32:33], s[0:1], 128
    """)
    lane_consts(a); tile_map_32x8(a)
    dma_voff128(a, 4, 1024, 5)
    a(f"""
    s_and_b32 s3, s8, 3
    s_lshl_b32 s3, s3, 2
    v_add_u32 v5, s3, v10
    v_xor_b32 v5, v9, v5
    v_mul_u32_u24 v3, 3584, v10
    v_lshl_add_u32 v3, v5, 4, v3
    s_lshl_b32 s7, s5, 7
    s_mul_i32 s6, s4, {64*3584}
    s_mul_i32 s28, s8, {4*3584}
    s_add_u32 s28, s28, s6
    s_lshl_b32 s29, s8, 10
    """)
    dw = Dma(a, 4, 40, 8, 1024, 30, 7)
    a("s_waitcnt lgkmcnt(0)")
    stamp(a)
    srd(a, 36, 32, LY.G, 2048 * 3584)
    srd(a, 40, 16, 0, 1792 * 1024)
    NST, NBUF, PF = 14, 5, 4
    def issue(st):
        buf = 32768 * (st % NBUF)
        for j in range(2):
            a(f"s_add_u32 m0, s29, {buf + 8192*j}")
            a(f"s_add_u32 s3, s28, {32*3584*j + 256*st}")
            a(f"buffer_load_dwordx4 v3, s[36:39], s3 offen lds")
        dw.issue(2, buf + 16384)
    for st in range(PF): issue(st)
    add64(a, 44, 32, LY.H); add64(a, 46, 32, LY.X1)
    wave_split(a)
    a("""
    s_lshl_b32 s6, s4, 6
    s_lshl_b32 s7, s9, 4
    s_add_u32 s6, s6, s7
    v_add_u32 v7, s6, v9
    v_lshlrev_b32 v7, 10, v7
    s_lshl_b32 s7, s5, 7
    s_lshl_b32 s3, s10, 6
    s_add_u32 s7, s7, s3
    v_lshl_add_u32 v7, v10, 3, v7
    v_add_u32 v7, s7, v7
    """)
    AF, ACC, WF, XR, AB = 32, 48, 64, 96, 104
    for c in range(2):
        a(f"global_load_dwordx2 v[{XR+2*c}:{XR+2*c+1}], v7, s[46:47] offset:{32*c}")
        a(f"global_load_dwordx2 v[{XR+4+2*c}:{XR+4+2*c+1}], v7, s[44:45] offset:{32*c}")
    a("s_lshl_b32 s12, s10, 2\ns_add_u32 s13, s12, 2")
    tr_base128(a, 12, 0, 16384, 5, 6, wave_chunk=12)
    tr_base128(a, 13, 0, 16384, 5, 6, wave_chunk=13)
    for c in range(2): a(f"v_add_u32 v{14+c}, 0x10000, v{12+c}\nv_add_u32 v{16+c}, 0x20000, v{12+c}")
    a(f"""
    v_xor_b32 v5, v10, v9
    v_lshlrev_b32 v5, 4, v5
    s_lshl_b32 s3, s9, 12
    v_lshl_add_u32 v{AB}, v9, 8, v5
    v_add_u32 v{AB}, s3, v{AB}
    """)
    for sp in range(1, 4): a(f"v_xor_b32 v{AB+sp}, {64*sp}, v{AB}")
    for gp in range(1, 3):
        for sp in range(4): a(f"v_add_u32 v{AB+4*gp+sp}, {0x10000*gp}, v{AB+sp}")
    for r in range(8): a(f"v_mov_b32 v{ACC+r}, 0")
    a("s_mov_b32 s23, 0xffff0000")
    for st in range(NST):
        later = sum(4 for k in range(st + 1, st + PF) if k < NST) + (4 if st < PF else 0)
        a(f"s_waitcnt vmcnt({later})\ns_barrier")
        if st in (0, 1, 4, 8, 12): stamp(a)
        if st + PF < NST: issue(st + PF)
        buf = st % NBUF; gp = buf >> 1; so = 32768 * (buf & 1)
        for sp in range(4):
            a(f"ds_read_b128 v[{AF+4*sp}:{AF+4*sp+3}], v{AB+4*gp+sp} offset:{so}")
            b = WF + 8 * sp
            for c in range(2):
                for h in range(2):
                    a(f"ds_read_b64_tr_b16 v[{b+4*c+2*h}:{b+4*c+2*h+1}], v{12+2*gp+c} offset:{so + (32*sp+4*h)*128}")
        for sp in range(4):
            a(f"s_waitcnt lgkmcnt({5*(3-sp)})")
            b = WF + 8 * sp
            for c in range(2):
                a(f"v_mfma_f32_16x16x32_bf16 v[{ACC+4*c}:{ACC+4*c+3}], v[{b+4*c}:{b+4*c+3}], v[{AF+4*sp}:{AF+4*sp+3}], v[{ACC+4*c}:{ACC+4*c+3}]")
    stamp(a)
    a("s_waitcnt vmcnt(0)")
    for c in range(2):
        x = ACC + 4 * c
        a(f"""
        v_cvt_pk_bf16_f32 v24, v{x}, v{x+1}
        v_cvt_pk_bf16_f32 v25, v{x+2}, v{x+3}
        v_lshlrev_b32 v{x}, 16, v24
        v_and_b32 v{x+1}, s23, v24
        v_lshlrev_b32 v{x+2}, 16, v25
        v_and_b32 v{x+3}, s23, v25
        v_lshlrev_b32 v24, 16, v{XR+2*c}
        v_and_b32 v25, s23, v{XR+2*c}
        v_lshlrev_b32 v26, 16, v{XR+2*c+1}
        v_and_b32 v27, s23, v{XR+2*c+1}
        v_pk_add_f32 v[{x}:{x+1}], v[{x}:{x+1}], v[24:25]
        v_pk_add_f32 v[{x+2}:{x+3}], v[{x+2}:{x+3}], v[26:27]
        v_cvt_pk_bf16_f32 v24, v{x}, v{x+1}
        v_cvt_pk_bf16_f32 v25, v{x+2}, v{x+3}
        v_lshlrev_b32 v{x}, 16, v24
        v_and_b32 v{x+1}, s23, v24
        v_lshlrev_b32 v{x+2}, 16, v25
        v_and_b32 v{x+3}, s23, v25
        v_lshlrev_b32 v24, 16, v{XR+4+2*c}
        v_and_b32 v25, s23, v{XR+4+2*c}
        v_lshlrev_b32 v26, 16, v{XR+4+2*c+1}
        v_and_b32 v27, s23, v{XR+4+2*c+1}
        v_pk_add_f32 v[{x}:{x+1}], v[{x}:{x+1}], v[24:25]
        v_pk_add_f32 v[{x+2}:{x+3}], v[{x+2}:{x+3}], v[26:27]
        v_cvt_pk_bf16_f32 v{WF+2*c}, v{x}, v{x+1}
        v_cvt_pk_bf16_f32 v{WF+2*c+1}, v{x+2}, v{x+3}
        global_store_dwordx2 v7, v[{WF+2*c}:{WF+2*c+1}], s[18:19] offset:{32*c}
        """)
    flush_stamps(a, 6)
    a("K6_END:\ns_endpgm")
    kernels.append(("k6_kernel", 256, 512, 163840, a.lines, 120, 56))

def gen_all(kernels):
    gen_k3(kernels); gen_k4(kernels); gen_k5(kernels); gen_k6(kernels)
```

```python
import sys, struct
sys.path.insert(0, "dev")
from asmlib import Asm, fix_hazards, stamp, flush_stamps, STAMPS
import layout as LY

NAME = "sequential_preLN__ssm_conv_s4__mixer_s_mlp__prompt"
def f2u(f): return struct.unpack("<I", struct.pack("<f", f))[0]
def hx(f): return "0x%08x" % f2u(f)
L2E = 1.4426950408889634
L2E_HI = struct.unpack("<f", struct.pack("<f", L2E))[0]
L2E_LO = L2E - L2E_HI

import os
CODE_PIECES = int(os.environ.get('CODEPF', '12'))
kernels = []

def add64(a, d, s, imm):
    a(f"s_add_u32 s{d}, s{s}, {imm}\ns_addc_u32 s{d+1}, s{s+1}, 0")

def wave_reduce_sum(a, regs):
    for m in ("row_shr:1 row_mask:0xf bank_mask:0xf", "row_shr:2 row_mask:0xf bank_mask:0xf", "row_shr:4 row_mask:0xf bank_mask:0xf",
              "row_shr:8 row_mask:0xf bank_mask:0xf", "row_bcast:15 row_mask:0xa bank_mask:0xf", "row_bcast:31 row_mask:0xc bank_mask:0xf"):
        for r in regs:
            a(f"v_add_f32_dpp v{r}, v{r}, v{r} {m}")

def rnd_bf16(a, d, s):
    a(f"v_cvt_pk_bf16_f32 v{d}, v{s}, v{s}\nv_lshlrev_b32 v{d}, 16, v{d}")

def gen_k1():
    a = Asm()
    RED = 0
    a(f"""
    s_cmp_ge_u32 s2, 256
    s_cbranch_scc1 K1_AUX
    s_load_dwordx2 s[16:17], s[0:1], 0
    s_load_dwordx2 s[32:33], s[0:1], 128
    v_lshlrev_b32 v1, 2, v0
    v_add_u32 v2, 0x1000, v1
    v_mov_b32 v3, 0
    v_mov_b32 v4, 0x1000
    v_lshrrev_b32 v6, 6, v0
    v_readfirstlane_b32 s8, v6
    s_lshl_b32 s3, s2, 13
    s_waitcnt lgkmcnt(0)
    s_add_u32 s34, s16, s3
    s_addc_u32 s35, s17, 0
    """)
    stamp(a)
    for r in range(8):
        a(f"global_load_dword v{10+r}, v{1 if r < 4 else 2}, s[34:35] offset:{(r & 3) * 1024}")
    for r in range(8):
        a(f"global_load_ushort v{20+r}, v{3 if r < 4 else 4}, s[34:35] offset:{(r & 3) * 1024}")
    UB = LY.UROW * 2
    add64(a, 36, 32, LY.UT); add64(a, 38, 32, LY.XT)
    a(f"""
    v_and_b32 v1, 15, v0
    v_bfe_u32 v2, v0, 4, 1
    v_lshlrev_b32 v3, 4, v1
    v_add_u32 v4, 0x1000, v3
    v_cmp_gt_u32 vcc, 4, v1
    v_cndmask_b32 v3, v4, v3, vcc
    s_lshl_b32 s3, s2, 1
    v_add_u32 v2, s3, v2
    v_mul_u32_u24 v2, {UB}, v2
    v_add_u32 v3, v2, v3
    v_mov_b32 v28, 0
    v_mov_b32 v29, 0
    v_mov_b32 v30, 0
    v_mov_b32 v31, 0
    v_cmp_gt_u32 vcc, 32, v0
    s_and_saveexec_b64 s[42:43], vcc
    global_store_dwordx4 v3, v[28:31], s[36:37]
    s_mov_b64 exec, s[42:43]
    s_lshl_b32 s3, s2, 4
    v_mul_u32_u24 v1, {2*UB}, v0
    v_add_u32 v1, s3, v1
    v_add_u32 v2, {UB}, v1
    v_lshlrev_b32 v3, 13, v0
    v_add_u32 v3, s3, v3
    v_add_u32 v4, 0x1000, v3
    s_mov_b32 s13, 0x05040100
    s_mov_b32 s14, 0x07060302
    s_mov_b32 s11, {hx(1.0/512)}
    s_mov_b32 s12, {hx(1e-5)}
    s_lshl_b32 s10, s8, 6
    v_mov_b32 v9, s10
    s_waitcnt vmcnt(1)
    """)
    stamp(a)
    for q in range(4):
        a(f"v_perm_b32 v{124+q}, v{11+2*q}, v{10+2*q}, s13")
        a(f"v_perm_b32 v{128+q}, v{11+2*q}, v{10+2*q}, s14")
    a("global_store_dwordx4 v3, v[124:127], s[38:39]\nglobal_store_dwordx4 v4, v[128:131], s[38:39]")
    for r in range(8):
        a(f"""
        v_lshlrev_b32 v{20+r}, 16, v{20+r}
        v_lshlrev_b32 v{70+2*r}, 16, v{10+r}
        v_and_b32 v{71+2*r}, 0xffff0000, v{10+r}
        """)
    for r in range(8):
        a(f"""
        v_sub_f32 v98, v{70+2*r}, v{20+r}
        v_sub_f32 v99, v{71+2*r}, v{20+r}
        v_add_f32 v{90+r}, v98, v99
        v_mul_f32 v{100+r}, v98, v98
        v_fmac_f32 v{100+r}, v99, v99
        """)
    wave_reduce_sum(a, list(range(90, 98)) + list(range(100, 108)))
    a(f"""
    s_mov_b32 exec_lo, 0
    s_mov_b32 exec_hi, 0x80000000
    ds_write_b128 v9, v[90:93] offset:{RED}
    ds_write_b128 v9, v[94:97] offset:{RED + 16}
    ds_write_b128 v9, v[100:103] offset:{RED + 32}
    ds_write_b128 v9, v[104:107] offset:{RED + 48}
    s_mov_b64 exec, -1
    v_mov_b32 v9, 0
    s_waitcnt lgkmcnt(0)
    s_barrier
    """)
    for w in range(4):
        for hh in range(4):
            a(f"ds_read_b128 v[{132+16*w+4*hh}:{135+16*w+4*hh}], v9 offset:{RED + 64*w + 16*hh}")
    a("s_waitcnt lgkmcnt(0)")
    for r in range(16):
        a(f"v_add_f32 v{132+r}, v{132+r}, v{148+r}\nv_add_f32 v{164+r}, v{164+r}, v{180+r}")
    for r in range(16):
        a(f"v_add_f32 v{132+r}, v{132+r}, v{164+r}")
    for r in range(8):
        a(f"""
        v_mul_f32 v{132+r}, s11, v{132+r}
        v_mul_f32 v{100+r}, s11, v{140+r}
        v_fma_f32 v{100+r}, -v{132+r}, v{132+r}, v{100+r}
        v_max_f32 v{100+r}, 0, v{100+r}
        v_add_f32 v{140+r}, v{20+r}, v{132+r}
        """)
        rnd_bf16(a, 100 + r, 100 + r)
        a(f"v_add_f32 v{100+r}, s12, v{100+r}")
        rnd_bf16(a, 100 + r, 100 + r)
        a(f"v_sqrt_f32 v{100+r}, v{100+r}")
        rnd_bf16(a, 100 + r, 100 + r)
        a(f"v_rcp_f32 v{108+r}, v{100+r}")
        rnd_bf16(a, 140 + r, 140 + r)
    for r in range(8):
        for e in range(2):
            x = 70 + 2 * r + e
            a(f"v_sub_f32 v{x}, v{x}, v{140+r}")
            rnd_bf16(a, x, x)
            a(f"""
            v_mul_f32 v98, v{x}, v{108+r}
            v_fma_f32 v99, -v98, v{100+r}, v{x}
            v_fma_f32 v{x}, v99, v{108+r}, v98
            """)
    for q in range(4):
        a(f"v_cvt_pk_bf16_f32 v{116+q}, v{70+4*q}, v{72+4*q}")
        a(f"v_cvt_pk_bf16_f32 v{120+q}, v{71+4*q}, v{73+4*q}")
    a(f"""
    global_store_dwordx4 v1, v[116:119], s[36:37] offset:64
    global_store_dwordx4 v2, v[120:123], s[36:37] offset:64
    """)
    flush_stamps(a, 1)
    a("s_endpgm")
    a(f"""
    K1_AUX:
    s_cmp_ge_u32 s2, 512
    s_cbranch_scc1 K1_END
    s_load_dwordx8 s[16:23], s[0:1], 80
    s_load_dwordx2 s[32:33], s[0:1], 128
    s_sub_u32 s3, s2, 256
    s_getpc_b64 s[44:45]
    K1_PCBASE:
    s_lshr_b32 s4, s3, 3
    s_lshl_b32 s4, s4, 12
    v_lshlrev_b32 v1, 4, v0
    v_add_u32 v1, s4, v1
    v_cmp_gt_u32 vcc, K6_END-K1_PCBASE-16, v1
    s_and_saveexec_b64 s[42:43], vcc
    s_cbranch_execz K1_NOCODE
    global_load_dwordx4 v[80:83], v1, s[44:45]
    K1_NOCODE:
    s_mov_b64 exec, -1
    s_cmp_ge_u32 s3, 144
    s_cbranch_scc1 K1_PF
    s_mul_hi_u32 s9, s3, {(2**32 + 17)//18}
    s_mul_i32 s4, s9, 18
    s_sub_u32 s3, s3, s4
    v_lshrrev_b32 v1, 4, v0
    v_and_b32 v2, 15, v0
    s_cmp_lt_u32 s3, 4
    s_mov_b32 s4, 1024
    s_mov_b32 s6, {LY.CS1}
    s_mov_b32 s10, 2048
    s_cselect_b32 s4, s4, 3584
    s_cselect_b32 s5, 0, 4
    s_cselect_b32 s6, s6, {LY.CS3}
    s_cselect_b32 s10, s10, 7168
    s_waitcnt lgkmcnt(0)
    s_cselect_b32 s24, s16, s20
    s_cselect_b32 s25, s17, s21
    s_sub_u32 s3, s3, s5
    s_lshl_b32 s7, s9, 6
    v_add_u32 v1, s7, v1
    v_mul_lo_u32 v1, v1, s4
    v_lshl_add_u32 v1, v2, 4, v1
    s_lshl_b32 s7, s3, 8
    v_add_u32 v1, s7, v1
    s_lshl_b32 s4, s4, 4
    """)
    for j in range(4):
        a(f"global_load_dwordx4 v[{16+4*j}:{19+4*j}], v1, s[24:25]")
        if j < 3: a("v_add_u32 v1, s4, v1")
    for r in range(8): a(f"v_mov_b32 v{4+r}, 0")
    for j in range(4):
        a(f"s_waitcnt vmcnt({3-j})")
        for q in range(4):
            a(f"""
            v_lshlrev_b32 v12, 16, v{16+4*j+q}
            v_and_b32 v13, 0xffff0000, v{16+4*j+q}
            v_add_f32 v{4+2*q}, v{4+2*q}, v12
            v_add_f32 v{5+2*q}, v{5+2*q}, v13
            """)
    a(f"""
    v_lshlrev_b32 v1, 5, v0
    ds_write_b128 v1, v[4:7]
    ds_write_b128 v1, v[8:11] offset:16
    s_waitcnt lgkmcnt(0)
    s_barrier
    v_cmp_gt_u32 vcc, 128, v0
    s_and_saveexec_b64 s[42:43], vcc
    s_cbranch_execz K1_END
    v_lshlrev_b32 v1, 2, v0
    """)
    for j in range(16):
        a(f"ds_read_b32 v{16+j}, v1 offset:{512*j}")
    a("s_waitcnt lgkmcnt(0)")
    for st in (8, 4, 2, 1):
        for j in range(st): a(f"v_add_f32 v{16+j}, v{16+j}, v{16+j+st}")
    a(f"""
    s_lshl_b32 s7, s3, 9
    s_add_u32 s6, s6, s7
    s_mul_i32 s7, s9, s10
    s_add_u32 s6, s6, s7
    v_add_u32 v1, s6, v1
    global_store_dword v1, v16, s[32:33]
    s_endpgm
    K1_PF:
    s_sub_u32 s3, s3, 144
    s_waitcnt lgkmcnt(0)
    s_mov_b32 s24, s18
    s_mov_b32 s25, s19
    s_mov_b32 s26, {512*1024}
    s_mov_b32 s27, 0x00020000
    s_mov_b32 s28, s22
    s_mov_b32 s29, s23
    s_mov_b32 s30, {1792*1024}
    s_mov_b32 s31, 0x00020000
    s_mul_i32 s4, s3, 8192
    v_lshlrev_b32 v1, 4, v0
    v_add_u32 v1, s4, v1
    v_add_u32 v2, 0x1000, v1
    buffer_load_dwordx4 v[4:7], v1, s[24:27], 0 offen
    buffer_load_dwordx4 v[20:23], v2, s[24:27], 0 offen
    s_mul_i32 s4, s3, 16384
    v_lshlrev_b32 v1, 4, v0
    v_add_u32 v1, s4, v1
    v_add_u32 v2, 0x1000, v1
    v_add_u32 v3, 0x2000, v1
    v_add_u32 v24, 0x3000, v1
    buffer_load_dwordx4 v[8:11], v1, s[28:31], 0 offen
    buffer_load_dwordx4 v[12:15], v2, s[28:31], 0 offen
    buffer_load_dwordx4 v[16:19], v3, s[28:31], 0 offen
    buffer_load_dwordx4 v[28:31], v24, s[28:31], 0 offen
    s_waitcnt vmcnt(0)
    K1_END:
    s_endpgm
    """)
    kernels.append(("k1_kernel", 512, 256, 8192, a.lines, 200, 48))

def emit(kernels):
    out = []
    hdr = open(f"cdna_kernels/{NAME}.s.ref").read().split("\n")
    for ln in hdr:
        if ln.startswith("; @launch") or not ln.startswith(";"):
            break
        if "Override launch geometry" in ln or "grid=ceil" in ln: continue
        out.append(ln)
    kernels = [k if len(k) == 8 else k + (0,) for k in kernels]
    for (lab, grid, block, lds, lines, nv, ns, na) in kernels:
        out.append(f"; @launch kernel={lab} grid=({grid},1,1) block=({block},1,1) lds={lds}")
    out.append('.amdgcn_target "amdgcn-amd-amdhsa--gfx950"')
    out.append(".text")
    for (lab, grid, block, lds, lines, nv, ns, na) in kernels:
        out += [f".globl {lab}", ".p2align 8", f".type {lab},@function", f"{lab}:"]
        out += fix_hazards(lines)
    out.append('.section .rodata,"a"')
    for (lab, grid, block, lds, lines, nv, ns, na) in kernels:
        acc = (nv + 3) // 4 * 4
        out += [".p2align 6", f".amdhsa_kernel {lab}", f"  .amdhsa_next_free_vgpr {acc + na if na else nv}", f"  .amdhsa_next_free_sgpr {100 if STAMPS else ns}",
                f"  .amdhsa_accum_offset {acc}", "  .amdhsa_group_segment_fixed_size 0", "  .amdhsa_kernarg_size 136",
                "  .amdhsa_user_sgpr_count 2", "  .amdhsa_user_sgpr_kernarg_segment_ptr 1", "  .amdhsa_system_sgpr_workgroup_id_x 1",
                ".end_amdhsa_kernel"]
    return "\n".join(out) + "\n"

if __name__ == "__main__":
    gen_k1()
    import gen2
    gen2.gen_all(kernels)
    import gen3
    gen3.gen_all(kernels)
    dst = sys.argv[1] if len(sys.argv) > 1 else f"cdna_kernels/{NAME}.s"
    open(dst, "w").write(emit(kernels))
    print("wrote", dst)
```

```python
import re

TRANS = ("v_exp_f32", "v_log_f32", "v_rcp_f32", "v_rsq_f32", "v_sqrt_f32", "v_sin_f32", "v_cos_f32", "v_rcp_iflag_f32")

def _regs(tok):
    tok = tok.strip()
    out = set()
    t = tok.replace("-", "").replace("|", "")
    m = re.match(r"^abs\((.*)\)$", t)
    if m: t = m.group(1)
    m = re.match(r"^([vas])(\d+)$", t)
    if m:
        out.add((m.group(1), int(m.group(2)))); return out
    m = re.match(r"^([vas])\[(\d+):(\d+)\]$", t)
    if m:
        for i in range(int(m.group(2)), int(m.group(3)) + 1): out.add((m.group(1), i))
        return out
    if t in ("vcc", "vcc_lo", "vcc_hi"): out.add(("s", "vcc"))
    if t in ("exec", "exec_lo", "exec_hi"): out.add(("s", "exec"))
    if t == "m0": out.add(("s", "m0"))
    return out

class Ins:
    def __init__(self, text):
        self.text = text
        body = text.split(";")[0].strip()
        self.label = body.endswith(":")
        self.directive = body.startswith(".")
        self.op = ""
        self.w = set(); self.r = set()
        self.kind = "other"
        if not body or self.label or self.directive:
            self.kind = "none"; return
        parts = body.split(None, 1)
        self.op = op = parts[0]
        rest = parts[1] if len(parts) > 1 else ""
        ops = []; depth = 0; cur = ""
        for ch in rest:
            if ch in "[(": depth += 1
            if ch in "])": depth -= 1
            if ch == "," and depth == 0: ops.append(cur); cur = ""
            else: cur += ch
        ops.append(cur)
        mods = ""
        if ops:
            lp = ops[-1].strip().split(None, 1)
            if lp:
                ops[-1] = lp[0]; mods = lp[1] if len(lp) > 1 else ""
        self.mods = mods
        ops = [o.strip() for o in ops if o.strip()]
        self.ops = ops
        R = lambda i: _regs(ops[i]) if i < len(ops) else set()
        allr = lambda a: set().union(*[_regs(o) for o in ops[a:]]) if len(ops) > a else set()
        self.dpp = "_dpp" in op or "quad_perm" in mods or "row_" in mods
        if op.startswith("v_mfma"):
            self.kind = "mfma"; self.w = R(0); self.ra = R(1) | R(2); self.rc = R(3); self.r = self.ra | self.rc
            self.sgemm = op.endswith("_f32") and ("x4_f32" in op or "x2_f32" in op)
            if "16x16x32" in op: self.passes = 4
            elif "32x32x16" in op: self.passes = 8
            elif "16x16x4_f32" in op: self.passes = 8
            elif "32x32x2_f32" in op: self.passes = 16
            else: raise ValueError(op)
        elif op.startswith("v_"):
            self.kind = "valu"
            if op.startswith("v_cmp"):
                self.w = R(0); self.r = allr(1)
                if op.startswith("v_cmpx"): self.w |= {("s", "exec")}
            elif op.startswith("v_permlane") and "swap" in op:
                self.w = R(0) | R(1); self.r = R(0) | R(1)
            elif "_co_" in op:
                self.w = R(0) | R(1); self.r = allr(2)
            else:
                self.w = R(0); self.r = allr(1)
                if op.startswith(("v_fmac", "v_dot2c", "v_mac", "v_pk_fmac")) or self.dpp: self.r |= R(0)
                if op.startswith("v_cndmask") and len(ops) == 3: self.r |= {("s", "vcc")}
            self.trans = op.split("_e")[0] in TRANS or op in TRANS
        elif op.startswith("ds_"):
            self.kind = "ds"
            if op.startswith(("ds_read", "ds_bpermute", "ds_permute", "ds_swizzle")) or "_rtn" in op:
                self.w = R(0); self.r = allr(1)
            else: self.r = allr(0)
        elif op.startswith(("buffer_", "global_", "flat_")):
            self.kind = "vmem"
            self.lds = (" lds" in (" " + mods)) or "load_lds" in op
            if "load" in op and not self.lds:
                self.w = R(0); self.r = allr(1)
            elif "atomic" in op and "sc0" in mods:
                self.w = R(0); self.r = allr(1)
            else:
                self.r = allr(0)
            if self.lds: self.r |= {("s", "m0")}
            self.widestore = "store" in op and ("x3" in op or "x4" in op)
            if self.widestore:
                self.sdata = R(0) if op.startswith("buffer_") else R(1)
        elif op.startswith("s_"):
            self.kind = "salu"
            if op.startswith(("s_cmp", "s_waitcnt", "s_barrier", "s_branch", "s_cbranch", "s_nop", "s_endpgm", "s_sleep", "s_setprio")):
                self.r = allr(0)
            else:
                self.w = R(0); self.r = allr(1)
                if "saveexec" in op: self.w |= {("s", "exec")}
        self.states = 1
        if op == "s_nop": self.states = int(ops[0], 0) + 1

def need(p, c):
    n = 0
    vw = {x for x in p.w if x[0] in "va"}
    sw = {x for x in p.w if x[0] == "s"}
    if p.kind == "valu":
        if c.kind == "mfma" and vw & c.r: n = max(n, 2)
        if c.kind == "mfma" and ("s", "exec") in sw: n = max(n, 4)
        if c.kind == "valu":
            if p.trans and not c.trans and vw & c.r: n = max(n, 1)
            if c.dpp and vw & c.r: n = max(n, 2)
            if c.op.startswith(("v_readlane", "v_readfirstlane")) and vw & c.r: n = max(n, 1)
            if c.op.startswith("v_permlane") and vw & c.r: n = max(n, 2)
            if sw & c.r:
                n = max(n, 4 if c.op.startswith(("v_readlane", "v_writelane")) else 2)
        if c.kind == "vmem" and sw & c.r: n = max(n, 5)
        if p.op.startswith("v_dot") and (vw & (c.r | c.w)) and c.kind in ("valu", "vmem", "ds", "mfma"):
            if c.op != p.op: n = max(n, 3)
    if p.kind == "mfma":
        big = {2: 5, 4: 8, 8: 12, 16: 20}[p.passes] if not p.sgemm else {2: 4, 4: 6, 8: 10, 16: 18}[p.passes]
        if c.kind == "mfma":
            if p.w & c.ra: n = max(n, big)
            if p.w & c.rc and not (p.w == c.rc and p.passes == c.passes and p.sgemm == c.sgemm):
                n = max(n, {2: 4, 4: 6, 8: 10, 16: 18}[p.passes])
        elif c.kind in ("valu", "vmem", "ds"):
            if p.w & (c.r | c.w): n = max(n, big)
        if c.kind == "valu" and not p.sgemm and p.rc & c.w: n = max(n, {2: 1, 4: 3, 8: 7, 16: 15}[p.passes])
    if p.kind == "vmem" and getattr(p, "widestore", False):
        if p.sdata & c.w: n = max(n, 2 if c.kind == "valu" else 1)
    if p.kind == "salu" and ("s", "m0") in p.w and c.kind == "vmem" and getattr(c, "lds", False): n = max(n, 1)
    return n

def fix_hazards(lines):
    out = []; hist = []
    for t in lines:
        ins = Ins(t)
        if ins.kind == "none":
            out.append(t); continue
        dist = 0; req = 0
        for p in reversed(hist):
            k = need(p, ins)
            if k > dist: req = max(req, k - dist)
            dist += p.states
            if dist > 24: break
        while req > 0:
            k = min(req, 16)
            nop = Ins(f"s_nop {k - 1}")
            out.append(f"    s_nop {k - 1}"); hist.append(nop); req -= k
        out.append(t); hist.append(ins)
        if len(hist) > 64: hist = hist[-40:]
    return out

class Asm:
    def __init__(self): self.lines = []
    def __call__(self, s):
        for ln in s.strip("\n").split("\n"):
            ln = ln.strip()
            if not ln: continue
            self.lines.append(ln if (ln.endswith(":") or ln.startswith(".")) else "    " + ln)
    def label(self, l): self.lines.append(l + ":")

import os
STAMPS = os.environ.get("STAMPS", "0") == "1"
def stamp(a):
    if not STAMPS: return
    i = getattr(a, "nst", 0)
    a(f"s_memtime s[{64+2*i}:{65+2*i}]")
    a.nst = i + 1
def flush_stamps(a, k, tid=None):
    if not STAMPS: return
    n = a.nst
    a("s_memrealtime s[96:97]")
    a(f"""
    s_waitcnt vmcnt(0) lgkmcnt(0)
    s_memtime s[92:93]
    s_waitcnt lgkmcnt(0)
    v_cmp_eq_u32 vcc, {tid if tid is not None else (256 if k >= 3 else 0)}, v0
    s_and_saveexec_b64 s[98:99], vcc
    s_lshl_b32 s3, s2, 7
    s_add_u32 s3, s3, {0x3000000 + k * 0x10000}
    v_mov_b32 v1, s3
    """)
    for i in range(n):
        a(f"v_mov_b32 v2, s{64+2*i}\nglobal_store_dword v1, v2, s[32:33] offset:{4*i}")
    a(f"v_mov_b32 v2, s92\nglobal_store_dword v1, v2, s[32:33] offset:{4*n}")
    a(f"s_getreg_b32 s3, hwreg(HW_REG_XCC_ID)\nv_mov_b32 v2, s3\nglobal_store_dword v1, v2, s[32:33] offset:116")
    a(f"s_getreg_b32 s3, hwreg(HW_REG_HW_ID)\nv_mov_b32 v2, s3\nglobal_store_dword v1, v2, s[32:33] offset:112")
    a(f"v_mov_b32 v2, s94\nglobal_store_dword v1, v2, s[32:33] offset:120")
    a(f"v_mov_b32 v2, s96\nglobal_store_dword v1, v2, s[32:33] offset:124")
    a(f"""
    s_mov_b64 exec, s[98:99]
    s_waitcnt vmcnt(0)
    s_memrealtime s[96:97]
    v_and_b32 v1, 63, v0
    v_cmp_eq_u32 vcc, 0, v1
    s_and_saveexec_b64 s[98:99], vcc
    v_lshrrev_b32 v1, 6, v0
    v_lshlrev_b32 v1, 3, v1
    s_lshl_b32 s3, s2, 7
    s_add_u32 s3, s3, {0x3800000 + k * 0x10000}
    v_add_u32 v1, s3, v1
    s_waitcnt lgkmcnt(0)
    v_mov_b32 v2, s94
    v_mov_b32 v3, s96
    global_store_dwordx2 v1, v[2:3], s[32:33]
    s_mov_b64 exec, s[98:99]
    """)

def kstart(a):
    if STAMPS: a("s_memrealtime s[94:95]")
```

```python
import sys, struct
from asmlib import Asm, stamp, flush_stamps, kstart
import layout as LY
def f2u(f): return struct.unpack("<I", struct.pack("<f", f))[0]
def hx(f): return "0x%08x" % f2u(f)
def add64(a, d, s, imm):
    a(f"s_add_u32 s{d}, s{s}, {imm}\ns_addc_u32 s{d+1}, s{s+1}, 0")
def rnd_bf16(a, d, s):
    a(f"v_cvt_pk_bf16_f32 v{d}, v{s}, v{s}\nv_lshlrev_b32 v{d}, 16, v{d}")
L2E = 1.4426950408889634
L2E_HI = struct.unpack("<f", struct.pack("<f", L2E))[0]
L2E_LO = L2E - L2E_HI

def gen_k2(kernels):
    a = Asm()
    kstart(a)
    USTR = 4288
    PAR = 0
    CT = PAR + 4096
    KD = CT + 8 * 3072 + 64
    KDS = 8448
    KHL = KD + 2 * KDS
    UC = KHL + 20480
    LDS = UC + 16 * USTR
    RED = UC
    UB = LY.UROW * 2
    XL = CT
    a(f"""
    s_cmp_ge_u32 s2, 256
    s_cbranch_scc1 K2_END
    s_load_dwordx16 s[16:31], s[0:1], 0
    s_load_dwordx2 s[34:35], s[0:1], 64
    s_load_dwordx4 s[48:51], s[0:1], 120
    s_load_dwordx8 s[52:59], s[0:1], 80
    v_lshrrev_b32 v1, 6, v0
    v_readfirstlane_b32 s8, v1
    v_and_b32 v2, 63, v0
    v_and_b32 v9, 15, v2
    v_lshrrev_b32 v10, 4, v2
    s_lshr_b32 s9, s8, 2
    s_and_b32 s10, s8, 3
    s_and_b32 s3, s2, 7
    s_lshl_b32 s3, s3, 5
    s_lshr_b32 s4, s2, 3
    s_add_u32 s61, s3, s4
    s_lshl_b32 s3, s61, 2
    v_lshlrev_b32 v13, 12, v0
    v_add_u32 v13, s3, v13
    v_and_b32 v3, 31, v2
    s_lshl_b32 s4, s8, 5
    v_add_u32 v3, s4, v3
    s_lshl_b32 s4, s61, 8
    v_add_u32 v4, s4, v3
    v_lshlrev_b32 v4, 1, v4
    s_lshl_b32 s4, s61, 1
    s_add_u32 s4, s4, s9
    s_lshl_b32 s5, s4, 1
    v_mov_b32 v5, s5
    s_lshl_b32 s5, s2, 13
    v_lshlrev_b32 v6, 4, v0
    v_add_u32 v6, s5, v6
    s_waitcnt lgkmcnt(0)
    s_mov_b32 s32, s50
    s_mov_b32 s33, s51
    s_load_dword s15, s[34:35], s3
    """)
    stamp(a)
    a("global_load_dwordx4 v[64:67], v6, s[16:17]")
    for i in range(6):
        a(f"global_load_ushort v{20+i}, v4, s[{18+2*i}:{19+2*i}]")
    a("global_load_ushort v26, v5, s[30:31]")
    add64(a, 36, 32, LY.ST1); add64(a, 44, 32, LY.HT)
    a(f"""
    v_and_b32 v5, 255, v0
    s_mul_i32 s5, s4, {UB}
    v_lshlrev_b32 v6, 4, v5
    v_add_u32 v6, s5, v6
    s_mul_i32 s5, s9, {8*USTR}
    s_add_u32 s5, s5, {UC}
    v_lshlrev_b32 v7, 4, v5
    v_add_u32 v7, s5, v7
    s_mul_i32 s3, s4, {LY.TROW}
    s_lshl_b32 s6, s10, 10
    s_add_u32 s3, s3, s6
    v_lshlrev_b32 v11, 5, v9
    v_lshl_add_u32 v11, v10, 3, v11
    v_add_u32 v12, s3, v11
    v_add_u32 v15, s5, v11
    v_add_u32 v15, s6, v15
    s_mov_b32 s23, 0xffff0000
    s_mov_b32 s11, {hx(1.0/512)}
    s_mov_b32 s14, {hx(1e-5)}
    """)
    a("s_waitcnt vmcnt(7)")
    for q in range(4):
        a(f"v_lshlrev_b32 v{72+2*q}, 16, v{64+q}\nv_and_b32 v{73+2*q}, s23, v{64+q}")
    a("v_readfirstlane_b32 s5, v72\nv_mov_b32 v80, 0\nv_mov_b32 v81, 0")
    for e in range(8):
        a(f"v_subrev_f32 v82, s5, v{72+e}\nv_add_f32 v80, v80, v82\nv_fmac_f32 v81, v82, v82")
    for m in ("row_shr:1 row_mask:0xf bank_mask:0xf", "row_shr:2 row_mask:0xf bank_mask:0xf", "row_shr:4 row_mask:0xf bank_mask:0xf",
              "row_shr:8 row_mask:0xf bank_mask:0xf", "row_bcast:15 row_mask:0xa bank_mask:0xf", "row_bcast:31 row_mask:0xc bank_mask:0xf"):
        a(f"v_add_f32_dpp v80, v80, v80 {m}\nv_add_f32_dpp v81, v81, v81 {m}")
    a(f"""
    v_readlane_b32 s6, v80, 63
    v_readlane_b32 s7, v81, 63
    v_mov_b32 v80, s6
    v_mov_b32 v81, s7
    v_mul_f32 v80, s11, v80
    v_mul_f32 v81, s11, v81
    v_fma_f32 v81, -v80, v80, v81
    v_max_f32 v81, 0, v81
    v_add_f32 v80, s5, v80
    """)
    rnd_bf16(a, 81, 81)
    a("v_add_f32 v81, s14, v81")
    rnd_bf16(a, 81, 81)
    a("v_sqrt_f32 v81, v81")
    rnd_bf16(a, 81, 81)
    rnd_bf16(a, 80, 80)
    a(f"""
    s_lshl_b32 s3, s2, 6
    s_lshl_b32 s5, s8, 3
    s_add_u32 s3, s3, s5
    v_mov_b32 v82, s3
    s_mov_b64 exec, 1
    global_store_dwordx2 v82, v[80:81], s[36:37] sc1
    s_mov_b64 exec, -1
    v_mov_b32 v88, 0
    v_mov_b32 v89, 0
    v_mov_b32 v90, 0
    v_mov_b32 v91, 0
    s_cmp_lg_u32 s2, 0
    s_cbranch_scc1 K2_NOZ
    v_lshlrev_b32 v84, 4, v0
    v_add_u32 v85, {LY.HM - 2048}, v84
    v_add_u32 v84, {LY.HM + 2048*1024 - 2048}, v84
    v_cmp_gt_u32 vcc, 128, v0
    v_cndmask_b32 v84, v84, v85, vcc
    v_cmp_gt_u32 vcc, 256, v0
    s_and_saveexec_b64 s[42:43], vcc
    global_store_dwordx4 v84, v[88:91], s[32:33]
    s_mov_b64 exec, s[42:43]
    K2_NOZ:
    s_waitcnt vmcnt(0)
    s_barrier
    s_cmp_lg_u32 s8, 0
    s_cbranch_scc1 K2_NOSIG
    s_and_b32 s3, s2, 3
    s_lshl_b32 s3, s3, 6
    v_mov_b32 v36, s3
    v_mov_b32 v37, 1
    s_mov_b64 exec, 1
    global_atomic_add v36, v37, s[48:49] sc1
    s_mov_b64 exec, -1
    K2_NOSIG:
    """)
    for j in range(4): a(f"global_load_dword v{144+j}, v13, s[16:17] offset:{1024*j}")
    a(f"""
    s_getpc_b64 s[46:47]
    K2_PCBASE:
    s_lshr_b32 s5, s2, 3
    s_lshl_b32 s5, s5, 13
    v_lshlrev_b32 v86, 4, v0
    v_add_u32 v86, s5, v86
    v_cmp_gt_u32 vcc, K6_END-K2_PCBASE-16, v86
    s_and_saveexec_b64 s[42:43], vcc
    s_cbranch_execz K2_NOCODE
    global_load_dwordx4 v[200:203], v86, s[46:47]
    K2_NOCODE:
    s_mov_b64 exec, -1
    s_cmp_ge_u32 s2, 144
    s_cbranch_scc1 K2_PFJ
    s_mul_hi_u32 s12, s2, {(2**32 + 17)//18}
    s_mul_i32 s5, s12, 18
    s_sub_u32 s13, s2, s5
    v_lshrrev_b32 v86, 4, v0
    v_and_b32 v85, 15, v0
    s_cmp_lt_u32 s13, 4
    s_mov_b32 s5, 1024
    s_cselect_b32 s5, s5, 3584
    s_cselect_b32 s6, 0, 4
    s_cselect_b32 s46, s52, s56
    s_cselect_b32 s47, s53, s57
    s_sub_u32 s6, s13, s6
    s_lshl_b32 s7, s12, 6
    v_add_u32 v86, s7, v86
    v_mul_lo_u32 v86, v86, s5
    v_lshl_add_u32 v86, v85, 4, v86
    s_lshl_b32 s7, s6, 8
    v_add_u32 v86, s7, v86
    s_lshl_b32 s5, s5, 5
    v_add_u32 v85, s5, v86
    global_load_dwordx4 v[176:179], v86, s[46:47]
    global_load_dwordx4 v[180:183], v85, s[46:47]
    s_branch K2_SIDE_DONE
    K2_PFJ:
    s_sub_u32 s5, s2, 144
    s_mov_b32 s40, s54
    s_mov_b32 s41, s55
    s_mov_b32 s42, {512*1024}
    s_mov_b32 s43, 0x00020000
    s_lshl_b32 s6, s5, 13
    v_lshlrev_b32 v86, 4, v0
    v_add_u32 v86, s6, v86
    buffer_load_dwordx4 v[184:187], v86, s[40:43], 0 offen
    s_mov_b32 s40, s58
    s_mov_b32 s41, s59
    s_mov_b32 s42, {1792*1024}
    v_add_u32 v86, s6, v86
    v_add_u32 v85, 0x2000, v86
    buffer_load_dwordx4 v[188:191], v86, s[40:43], 0 offen
    buffer_load_dwordx4 v[192:195], v85, s[40:43], 0 offen
    K2_SIDE_DONE:
    """)
    a(f"""
    v_lshlrev_b32 v40, 1, v9
    v_cvt_f32_u32 v41, v40
    v_add_u32 v40, 1, v40
    v_cvt_f32_u32 v42, v40
    v_lshlrev_b32 v40, 5, v9
    v_cvt_f32_u32 v44, v40
    v_lshlrev_b32 v40, 2, v9
    v_add_u32 v40, 0x200, v40
    v_and_b32 v45, 3, v9
    v_lshlrev_b32 v45, 3, v45
    v_bfe_u32 v46, v9, 2, 1
    v_lshlrev_b32 v46, 9, v46
    v_add3_u32 v45, v45, v46, 0
    v_add_u32 v45, 0x400, v45
    v_cmp_gt_u32 vcc, 8, v9
    v_cndmask_b32 v40, v45, v40, vcc
    v_cvt_f32_u32 v43, v40
    s_mov_b32 s4, {hx(L2E_HI)}
    s_mov_b32 s5, {hx(L2E_LO)}
    s_mov_b32 s6, {hx(0.6931471805599453)}
    s_mov_b32 s7, {hx(2048.0)}
    s_mov_b32 s23, 0xffff0000
    v_lshlrev_b32 v3, 4, v3
    s_lshl_b32 s11, s8, 9
    v_lshlrev_b32 v8, 6, v10
    v_add_u32 v8, s11, v8
    s_mul_i32 s11, s8, 3072
    s_add_u32 s11, s11, {CT}
    v_lshlrev_b32 v47, 4, v2
    v_add_u32 v47, s11, v47
    """)
    for r in range(48, 60): a(f"v_mov_b32 v{r}, 0")
    stamp(a)
    for i in range(7):
        a(f"v_lshlrev_b32 v{20+i}, 16, v{20+i}")
    a(f"""
    v_mul_f32 v27, s4, v26
    v_fma_f32 v28, v26, s4, -v27
    v_fmac_f32 v28, s5, v26
    v_exp_f32 v27, v27
    v_mul_f32 v28, s6, v28
    v_fma_f32 v27, v27, v28, v27
    """)
    rnd_bf16(a, 27, 27)
    a(f"""
    v_mul_f32 v20, v27, v20
    v_mul_f32 v21, v27, v21
    v_mul_f32 v22, v27, v22
    v_mul_f32 v23, v27, v23
    v_mul_f32 v32, s4, v20
    v_mul_f32 v33, 0.15915494, v21
    v_mul_f32 v34, v24, v22
    v_mul_f32 v35, v24, v23
    v_fma_f32 v34, -v25, v23, v34
    v_fma_f32 v35, v25, v22, v35
    ds_write_b128 v3, v[32:35] offset:{PAR}
    v_mul_f32 v36, s7, v32
    v_mul_f32 v37, s7, v33
    v_fract_f32 v37, v37
    v_exp_f32 v36, v36
    v_sin_f32 v38, v37
    v_cos_f32 v39, v37
    v_mul_f32 v39, v34, v39
    v_fma_f32 v39, -v35, v38, v39
    v_mul_f32 v39, v36, v39
    """)
    for m in ("row_shr:1 row_mask:0xf bank_mask:0xf", "row_shr:2 row_mask:0xf bank_mask:0xf", "row_shr:4 row_mask:0xf bank_mask:0xf",
              "row_shr:8 row_mask:0xf bank_mask:0xf", "row_bcast:15 row_mask:0xa bank_mask:0xf"):
        a(f"v_add_f32_dpp v39, v39, v39 {m}")
    a(f"""
    s_lshl_b32 s11, s8, 2
    v_mov_b32 v36, s11
    s_mov_b32 exec_lo, 0x80000000
    s_mov_b32 exec_hi, 0
    ds_write_b32 v36, v39 offset:{CT + 8*3072}
    s_mov_b64 exec, -1
    s_waitcnt lgkmcnt(0)
    """)
    F = [41, 42, 43, 44]
    for sg in range(2):
        for j in range(4):
            a(f"ds_read_b128 v[{80+4*j}:{83+4*j}], v8 offset:{PAR + 256*sg + 16*j}")
        a("s_waitcnt lgkmcnt(0)")
        for tau in (3, 0, 1, 2):
            T, R = 128, 132
            for j in range(4): a(f"v_mul_f32 v{T+j}, v{80+4*j}, v{F[tau]}")
            for j in range(4): a(f"v_mul_f32 v{R+j}, v{81+4*j}, v{F[tau]}")
            for j in range(4): a(f"v_fract_f32 v{R+j}, v{R+j}")
            for j in range(4): a(f"v_exp_f32 v{T+j}, v{T+j}")
            for j in range(4): a(f"v_sin_f32 v{R+4+j}, v{R+j}")
            for j in range(4): a(f"v_cos_f32 v{R+j}, v{R+j}")
            for j in range(4): a(f"v_mul_f32 v{R+4+j}, v{T+j}, v{R+4+j}")
            for j in range(4): a(f"v_mul_f32 v{R+j}, v{T+j}, v{R+j}")
            if tau == 3:
                for j in range(4):
                    a(f"""
                    v_mul_f32 v{T}, v{82+4*j}, v{R+j}
                    v_mul_f32 v{T+1}, v{82+4*j}, v{R+4+j}
                    v_fma_f32 v{T}, -v{83+4*j}, v{R+4+j}, v{T}
                    v_fma_f32 v{R+4+j}, -v{83+4*j}, v{R+j}, -v{T+1}
                    v_mov_b32 v{R+j}, v{T}
                    """)
            H = 96 + 8 * tau
            for j in range(4): a(f"v_cvt_pk_bf16_f32 v{H+j}, v{R+j}, v{R+4+j}")
            for j in range(4):
                a(f"v_lshlrev_b32 v{T+j}, 16, v{H+j}\nv_and_b32 v{140+j}, s23, v{H+j}")
            for j in range(4):
                a(f"v_sub_f32 v{R+j}, v{R+j}, v{T+j}\nv_sub_f32 v{R+4+j}, v{R+4+j}, v{140+j}")
            for j in range(4): a(f"v_cvt_pk_bf16_f32 v{H+4+j}, v{R+j}, v{R+4+j}")
            if tau != 3:
                acc = 48 + 4 * tau
                a(f"v_mfma_f32_16x16x32_bf16 v[{acc}:{acc+3}], v[{H}:{H+3}], v[120:123], v[{acc}:{acc+3}]")
                a(f"v_mfma_f32_16x16x32_bf16 v[{acc}:{acc+3}], v[{H}:{H+3}], v[124:127], v[{acc}:{acc+3}]")
                a(f"v_mfma_f32_16x16x32_bf16 v[{acc}:{acc+3}], v[{H+4}:{H+7}], v[120:123], v[{acc}:{acc+3}]")
    stamp(a)
    for tau in range(3):
        a(f"ds_write_b128 v47, v[{48+4*tau}:{51+4*tau}] offset:{1024*tau}")
    a(f"""
    s_mul_i32 s11, s9, {4*3072}
    s_add_u32 s11, s11, {CT}
    v_lshlrev_b32 v24, 2, v5
    v_add_u32 v24, s11, v24
    s_mul_i32 s12, s9, {KDS}
    s_add_u32 s12, s12, {KD}
    v_bfe_u32 v25, v5, 2, 4
    v_lshrrev_b32 v26, 6, v5
    v_and_b32 v27, 3, v5
    v_lshlrev_b32 v28, 7, v25
    v_add_u32 v28, s12, v28
    v_lshl_add_u32 v29, v26, 5, v28
    v_lshl_add_u32 v29, v27, 3, v29
    v_lshlrev_b32 v30, 6, v26
    v_lshl_add_u32 v30, v27, 4, v30
    v_add_u32 v30, 0x800, v30
    v_and_b32 v31, 1, v26
    v_lshlrev_b32 v31, 11, v31
    v_lshl_add_u32 v31, v27, 5, v31
    v_add_u32 v31, 0x1000, v31
    v_cmp_gt_u32 vcc, 2, v26
    v_cndmask_b32 v30, v31, v30, vcc
    v_add_u32 v30, v30, v28
    s_lshl_b32 s13, s9, 4
    v_mov_b32 v31, s13
    s_cmp_lg_u32 s8, 0
    s_cbranch_scc1 K2_NOPOLL
    v_and_b32 v36, 3, v2
    v_lshlrev_b32 v36, 6, v36
    s_mov_b32 s3, 0
    K2_POLL:
    global_load_dword v37, v36, s[48:49] sc1
    s_waitcnt vmcnt(0)
    v_cmp_gt_u32 vcc, 64, v37
    s_add_u32 s3, s3, 1
    s_cmp_eq_u64 vcc, 0
    s_cbranch_scc1 K2_NOPOLL
    s_sleep 2
    s_cmp_lt_u32 s3, 0x8000
    s_cbranch_scc1 K2_POLL
    K2_NOPOLL:
    s_waitcnt lgkmcnt(0)
    s_barrier
    v_lshlrev_b32 v36, 5, v0
    global_load_dwordx4 v[148:151], v36, s[36:37] sc1
    global_load_dwordx4 v[152:155], v36, s[36:37] offset:16 sc1
    """)
    for tau in range(3):
        for p in range(4):
            a(f"ds_read_b32 v{48+4*tau+p}, v24 offset:{3072*p + 1024*tau}")
    a(f"ds_read_b128 v[60:63], v31 offset:{CT + 8*3072}")
    a("s_waitcnt lgkmcnt(0)")
    for tau in range(4):
        b = 48 + 4 * tau
        a(f"v_add_f32 v{b}, v{b}, v{b+1}\nv_add_f32 v{b+2}, v{b+2}, v{b+3}\nv_add_f32 v{b}, v{b}, v{b+2}")
    a(f"""
    ds_write2_b32 v29, v48, v52 offset0:0 offset1:1
    ds_write_b32 v30, v56
    v_mov_b32 v31, s12
    ds_write_b32 v31, v60 offset:{4*2048}
    s_waitcnt lgkmcnt(0)
    s_barrier
    """)
    stamp(a)
    for it in range(2):
        if it == 1:
            a("v_cmp_gt_u32 vcc, 128, v0\ns_and_saveexec_b64 s[42:43], vcc\ns_cbranch_execz K2_EXP_DONE")
        a(f"""
        v_add_u32 v1, {512*it}, v0
        v_cmp_le_u32 vcc, 320, v1
        v_subrev_u32 v24, 320, v1
        v_cndmask_b32 v1, v1, v24, vcc
        v_mov_b32 v24, {KD}
        v_mov_b32 v25, {KD + KDS}
        v_cndmask_b32 v24, v24, v25, vcc
        v_mov_b32 v25, {KHL}
        v_mov_b32 v26, {KHL + 10240}
        v_cndmask_b32 v25, v25, v26, vcc
        v_lshl_add_u32 v25, v1, 4, v25
        v_lshlrev_b32 v1, 3, v1
        v_sub_u32 v1, {LY.KOFF}, v1
        """)
        for e in range(8):
            a(f"""
            v_subrev_u32 v{50+e}, {e}, v1
            v_min_u32 v{60+e}, 0x7ff, v{50+e}
            v_cvt_f32_u32 v{60+e}, v{60+e}
            """)
            rnd_bf16(a, 60 + e, 60 + e)
            a(f"""
            v_cvt_u32_f32 v{60+e}, v{60+e}
            v_lshl_add_u32 v{60+e}, v{60+e}, 2, v24
            ds_read_b32 v{70+e}, v{60+e}
            """)
        a("s_waitcnt lgkmcnt(0)")
        for e in range(8):
            a(f"""
            v_cmp_gt_u32 vcc, 0x800, v{50+e}
            v_cndmask_b32 v{70+e}, 0, v{70+e}, vcc
            """)
        for q in range(4):
            a(f"""
            v_cvt_pk_bf16_f32 v{80+q}, v{70+2*q}, v{71+2*q}
            v_lshlrev_b32 v60, 16, v{80+q}
            v_and_b32 v61, 0xffff0000, v{80+q}
            v_sub_f32 v60, v{70+2*q}, v60
            v_sub_f32 v61, v{71+2*q}, v61
            v_cvt_pk_bf16_f32 v{84+q}, v60, v61
            """)
        a("ds_write_b128 v25, v[80:83]\nds_write_b128 v25, v[84:87] offset:5120")
        if it == 1: a("K2_EXP_DONE:\ns_mov_b64 exec, s[42:43]")
    a("s_waitcnt vmcnt(0)")
    for j in range(4):
        mb, dn = 148 + 2 * j, 149 + 2 * j
        a(f"""
        v_rcp_f32 v64, v{dn}
        v_lshlrev_b32 v{66+j}, 16, v{144+j}
        v_and_b32 v{70+j}, s23, v{144+j}
        """)
        for x in (66 + j, 70 + j):
            a(f"v_sub_f32 v{x}, v{x}, v{mb}")
            rnd_bf16(a, x, x)
            a(f"v_mul_f32 v65, v{x}, v64\nv_fma_f32 v74, -v65, v{dn}, v{x}\nv_fma_f32 v{x}, v74, v64, v65")
    a(f"""
    v_cvt_pk_bf16_f32 v76, v66, v67
    v_cvt_pk_bf16_f32 v77, v68, v69
    v_cvt_pk_bf16_f32 v78, v70, v71
    v_cvt_pk_bf16_f32 v79, v72, v73
    s_mov_b32 s13, 0x05040100
    s_mov_b32 s14, 0x07060302
    v_perm_b32 v80, v145, v144, s13
    v_perm_b32 v81, v147, v146, s13
    v_perm_b32 v82, v145, v144, s14
    v_perm_b32 v83, v147, v146, s14
    v_lshlrev_b32 v1, 3, v0
    v_add_u32 v36, {UC + 64}, v1
    ds_write_b64 v36, v[76:77]
    ds_write_b64 v36, v[78:79] offset:{8*USTR}
    v_add_u32 v36, {XL}, v1
    ds_write_b64 v36, v[80:81]
    ds_write_b64 v36, v[82:83] offset:4096
    v_mov_b32 v88, 0
    v_mov_b32 v89, 0
    v_mov_b32 v90, 0
    v_mov_b32 v91, 0
    v_and_b32 v36, 15, v0
    v_lshlrev_b32 v36, 4, v36
    v_add_u32 v37, 0x1000, v36
    v_cmp_gt_u32 vcc, 64, v36
    v_cndmask_b32 v36, v37, v36, vcc
    v_bfe_u32 v37, v0, 4, 1
    v_mul_u32_u24 v37, {8*USTR}, v37
    v_add3_u32 v36, v36, v37, 0
    v_add_u32 v36, {UC}, v36
    v_and_b32 v37, 15, v0
    v_cmp_gt_u32 vcc, 12, v37
    v_cmp_gt_u32 s[42:43], 32, v0
    s_and_b64 vcc, vcc, s[42:43]
    s_and_saveexec_b64 s[42:43], vcc
    ds_write_b128 v36, v[88:91]
    s_mov_b64 exec, s[42:43]
    s_waitcnt lgkmcnt(0)
    s_barrier
    ds_read_b128 v[144:147], v7
    ds_read_b128 v[148:151], v7 offset:16
    ds_read_b128 v[152:155], v7 offset:4096
    ds_read_b128 v[156:159], v7 offset:4112
    s_waitcnt lgkmcnt(0)
    """)
    for it in range(2):
        b = 144 + 8 * it
        if it == 1:
            a("v_cmp_gt_u32 vcc, 8, v5\ns_and_saveexec_b64 s[42:43], vcc")
        off0 = 4096 * it
        for cc in range(1, 8):
            e = cc >> 1
            if cc & 1 == 0:
                if e % 2 == 0:
                    a(f"ds_write_b128 v7, v[{b+e}:{b+e+3}] offset:{cc*USTR + off0}")
                else:
                    for q in range(4): a(f"v_mov_b32 v{24+q}, v{b+e+q}")
                    a(f"ds_write_b128 v7, v[24:27] offset:{cc*USTR + off0}")
            else:
                t = 28 if (cc & 2) else 88
                for q in range(4): a(f"v_alignbit_b32 v{t+q}, v{b+e+q+1}, v{b+e+q}, 16")
                a(f"ds_write_b128 v7, v[{t}:{t+3}] offset:{cc*USTR + off0}")
        if it == 1: a("s_mov_b64 exec, s[42:43]")
    a(f"""
    s_lshl_b32 s3, s9, 12
    s_lshl_b32 s6, s10, 10
    s_add_u32 s3, s3, s6
    v_add_u32 v36, s3, v11
    ds_read_b64 v[16:17], v36 offset:{XL}
    ds_read_b64 v[18:19], v36 offset:{XL+512}
    """)
    a(f"""
    v_and_b32 v13, 7, v9
    v_mul_u32_u24 v13, {USTR}, v13
    v_and_b32 v14, 8, v9
    v_lshl_add_u32 v14, v10, 3, v14
    v_lshl_add_u32 v13, v14, 1, v13
    s_mul_i32 s4, s9, {8*USTR}
    s_add_u32 s4, s4, {UC}
    v_add_u32 v13, s4, v13
    v_lshlrev_b32 v14, 5, v9
    v_sub_u32 v14, 480, v14
    v_lshl_add_u32 v14, v10, 4, v14
    s_mul_i32 s5, s9, 10240
    s_add_u32 s5, s5, {KHL}
    v_add_u32 v14, s5, v14
    ds_read_b64 v[20:21], v15 offset:64
    ds_read_b64 v[22:23], v15 offset:{512+64}
    """)
    for r in range(32): a(f"v_mov_b32 v{32+r}, 0")
    a("s_waitcnt lgkmcnt(0)\ns_barrier")
    stamp(a)
    def SQ(d0):
        if d0 == 0: return list(range(0, 8)), list(range(0, 8))
        if d0 == 32: return list(range(0, 9)), list(range(-1, 8))
        return list(range(1, 9)), list(range(-1, 7))
    base = 64
    U = {s: base + 4 * s for s in range(9)}
    KHr = {q: base + 36 + 4 * (q + 1) for q in range(-1, 8)}
    KLr = {q: base + 72 + 4 * (q + 1) for q in range(-1, 8)}
    KLr[7] = 24
    def body(d0):
        S, Q = SQ(d0)
        L = []
        for q in Q:
            o = 2 * (LY.KOFF - 240 - 256 * q - d0)
            L.append(f"ds_read_b128 v[{KHr[q]}:{KHr[q]+3}], v14 offset:{o}")
            L.append(f"ds_read_b128 v[{KLr[q]}:{KLr[q]+3}], v14 offset:{o + 5120}")
        for s in S:
            L.append(f"ds_read_b128 v[{U[s]}:{U[s]+3}], v13 offset:{512*s - 2*d0 + 64}")
        for ln in L: a(ln)
        for k, s in enumerate(S):
            a(f"s_waitcnt lgkmcnt({len(S) - 1 - k})")
            for q in Q:
                t = s + q
                if 0 <= t <= 7:
                    a(f"v_mfma_f32_16x16x32_bf16 v[{32+4*t}:{35+4*t}], v[{U[s]}:{U[s]+3}], v[{KHr[q]}:{KHr[q]+3}], v[{32+4*t}:{35+4*t}]")
                    a(f"v_mfma_f32_16x16x32_bf16 v[{32+4*t}:{35+4*t}], v[{U[s]}:{U[s]+3}], v[{KLr[q]}:{KLr[q]+3}], v[{32+4*t}:{35+4*t}]")
    a("s_cmp_lg_u32 s10, 0\ns_cbranch_scc1 K2_GEN")
    body(0); body(32)
    a("s_branch K2_RED")
    a(f"""
    K2_GEN:
    s_sub_u32 s4, s10, 1
    s_lshl_b32 s4, s4, 7
    v_subrev_u32 v13, s4, v13
    v_subrev_u32 v14, s4, v14
    """)
    body(64); body(96)
    a("K2_RED:")
    stamp(a)
    a(f"""
    s_lshl_b32 s4, s8, 13
    s_add_u32 s4, s4, {RED}
    v_lshlrev_b32 v3, 4, v2
    v_add_u32 v4, s4, v3
    s_lshl_b32 s5, s9, 15
    s_lshl_b32 s6, s10, 11
    s_add_u32 s5, s5, s6
    s_add_u32 s5, s5, {RED}
    v_add_u32 v5, s5, v3
    s_barrier
    """)
    for t in range(8): a(f"ds_write_b128 v4, v[{32+4*t}:{35+4*t}] offset:{1024*t}")
    a("s_waitcnt lgkmcnt(0)\ns_barrier")
    for p in range(4):
        for i in range(2):
            a(f"ds_read_b128 v[{64+8*p+4*i}:{67+8*p+4*i}], v5 offset:{8192*p + 1024*i}")
    a(f"""
    s_lshl_b32 s6, s15, 16
    s_and_b32 s7, s15, 0xffff0000
    s_cmp_eq_u32 s9, 0
    s_cselect_b32 s6, s6, s7
    s_waitcnt vmcnt(0) lgkmcnt(0)
    """)
    for k in range(8):
        a(f"v_add_f32 v{64+k}, v{64+k}, v{72+k}\nv_add_f32 v{80+k}, v{80+k}, v{88+k}")
    for k in range(8): a(f"v_add_f32 v{64+k}, v{64+k}, v{80+k}")
    for i in range(2):
        for r in range(4):
            y = 64 + 4 * i + r
            rnd_bf16(a, y, y)
            usrc = 20 + 2 * i + (r >> 1); xsrc = 16 + 2 * i + (r >> 1)
            if r & 1:
                a(f"v_and_b32 v{90+2*r}, 0xffff0000, v{usrc}\nv_and_b32 v{91+2*r}, 0xffff0000, v{xsrc}")
            else:
                a(f"v_lshlrev_b32 v{90+2*r}, 16, v{usrc}\nv_lshlrev_b32 v{91+2*r}, 16, v{xsrc}")
            a(f"v_mul_f32 v{90+2*r}, s6, v{90+2*r}")
            rnd_bf16(a, 90 + 2 * r, 90 + 2 * r)
            a(f"v_add_f32 v{y}, v{y}, v{90+2*r}")
            rnd_bf16(a, y, y)
            a(f"v_add_f32 v{y}, v{y}, v{91+2*r}")
        a(f"v_cvt_pk_bf16_f32 v{100+2*i}, v{64+4*i}, v{65+4*i}")
        a(f"v_cvt_pk_bf16_f32 v{101+2*i}, v{66+4*i}, v{67+4*i}")
        a(f"global_store_dwordx2 v12, v[{100+2*i}:{101+2*i}], s[44:45] offset:{512*i}")
    a("s_cmp_ge_u32 s2, 144\ns_cbranch_scc1 K2_FIN")
    for q in range(4):
        a(f"""
        v_lshlrev_b32 v{32+2*q}, 16, v{176+q}
        v_and_b32 v{33+2*q}, s23, v{176+q}
        v_lshlrev_b32 v40, 16, v{180+q}
        v_and_b32 v41, s23, v{180+q}
        v_add_f32 v{32+2*q}, v{32+2*q}, v40
        v_add_f32 v{33+2*q}, v{33+2*q}, v41
        """)
    a(f"""
    v_lshlrev_b32 v1, 5, v0
    ds_write_b128 v1, v[32:35]
    ds_write_b128 v1, v[36:39] offset:16
    s_waitcnt lgkmcnt(0)
    s_barrier
    v_cmp_gt_u32 vcc, 128, v0
    s_and_saveexec_b64 s[42:43], vcc
    s_cbranch_execz K2_FIN
    v_lshlrev_b32 v1, 2, v0
    """)
    for j in range(32):
        a(f"ds_read_b32 v{32+j}, v1 offset:{512*j}")
    a(f"""
    s_mul_hi_u32 s12, s2, {(2**32 + 17)//18}
    s_mul_i32 s5, s12, 18
    s_sub_u32 s13, s2, s5
    s_cmp_lt_u32 s13, 4
    s_mov_b32 s6, {LY.CS1}
    s_mov_b32 s10, 2048
    s_cselect_b32 s5, 0, 4
    s_cselect_b32 s6, s6, {LY.CS3}
    s_cselect_b32 s10, s10, 7168
    s_sub_u32 s13, s13, s5
    s_lshl_b32 s7, s13, 9
    s_add_u32 s6, s6, s7
    s_mul_i32 s7, s12, s10
    s_add_u32 s6, s6, s7
    v_add_u32 v1, s6, v1
    s_waitcnt lgkmcnt(0)
    """)
    for st in (16, 8, 4, 2, 1):
        for j in range(st): a(f"v_add_f32 v{32+j}, v{32+j}, v{32+j+st}")
    a("global_store_dword v1, v32, s[32:33]\nK2_FIN:\ns_mov_b64 exec, -1")
    flush_stamps(a, 2)
    a("K2_END:\ns_endpgm")
    kernels.append(("k2_kernel", 256, 512, LDS, a.lines, 208, 64))

def gen_all(kernels):
    gen_k2(kernels)
```

```python
import sys, struct
from asmlib import Asm, stamp, flush_stamps, kstart
import layout as LY
from gen2 import f2u, hx, add64, rnd_bf16
L2E = 1.4426950408889634
GK0 = -2 * L2E * 0.7978845608028654
GK1 = GK0 * 0.044715

def srd(a, d, base, off, nbytes):
    a(f"""
    s_add_u32 s{d}, s{base}, {off}
    s_addc_u32 s{d+1}, s{base+1}, 0
    s_mov_b32 s{d+2}, {nbytes}
    s_mov_b32 s{d+3}, 0x00020000
    """)

def lane_consts(a):
    a("""
    v_lshrrev_b32 v1, 6, v0
    v_readfirstlane_b32 s8, v1
    v_and_b32 v2, 63, v0
    v_and_b32 v9, 15, v0
    v_bfe_u32 v10, v0, 4, 2
    """)

def dma_voff128(a, vd, ld, vt):
    a(f"""
    v_lshrrev_b32 v{vd}, 3, v2
    v_bfe_u32 v{vt}, v2, 4, 1
    v_lshlrev_b32 v{vt}, 1, v{vt}
    s_and_b32 s3, s8, 1
    s_lshl_b32 s3, s3, 2
    v_or_b32 v{vt}, s3, v{vt}
    v_and_b32 v1, 7, v2
    v_xor_b32 v{vt}, v1, v{vt}
    v_mul_u32_u24 v{vd}, {ld}, v{vd}
    v_lshl_add_u32 v{vd}, v{vt}, 4, v{vd}
    """)

NW = 8
class Dma:
    def __init__(self, a, voff, srdr, rows, ld, sso, soff0):
        self.a, self.voff, self.srdr, self.rows, self.ld, self.sso = a, voff, srdr, rows, ld, sso
        a(f"s_mul_i32 s{sso}, s8, {rows*ld}\ns_lshl_b32 s{sso+1}, s8, 10")
        if soff0 is not None: a(f"s_add_u32 s{sso}, s{sso}, s{soff0}")
    def issue(self, n, ldsbase, voffs=None):
        a = self.a
        for j in range(n):
            vo = self.voff if voffs is None else voffs[j % len(voffs)]
            a(f"s_add_u32 m0, s{self.sso+1}, {ldsbase + 1024*NW*j}")
            a(f"buffer_load_dwordx4 v{vo}, s[{self.srdr}:{self.srdr+3}], s{self.sso} offen lds")
            a(f"s_add_u32 s{self.sso}, s{self.sso}, {NW*self.rows*self.ld}")

def tr_base128(a, vd, chunk2_expr_imm, ldsbase, vt1, vt2, wave_chunk=False):
    a(f"""
    v_bfe_u32 v{vt1}, v9, 3, 1
    v_lshlrev_b32 v{vt1}, 1, v{vt1}
    v_and_b32 v{vt2}, 1, v10
    v_lshl_or_b32 v{vt1}, v{vt2}, 2, v{vt1}
    v_bfe_u32 v{vt2}, v9, 1, 1
    """)
    if wave_chunk:
        a(f"v_add_u32 v{vt2}, s{wave_chunk}, v{vt2}")
    else:
        a(f"v_add_u32 v{vt2}, {chunk2_expr_imm}, v{vt2}")
    a(f"""
    v_xor_b32 v{vt1}, v{vt1}, v{vt2}
    v_lshlrev_b32 v{vt1}, 4, v{vt1}
    v_and_b32 v{vt2}, 1, v9
    v_lshl_add_u32 v{vt1}, v{vt2}, 3, v{vt1}
    v_lshrrev_b32 v{vt2}, 2, v9
    v_lshl_add_u32 v{vt2}, v10, 3, v{vt2}
    v_lshl_add_u32 v{vd}, v{vt2}, 7, v{vt1}
    v_add_u32 v{vd}, {ldsbase}, v{vd}
    """)

def xor_reduce(a, r, t):
    a(f"""
    v_mov_b32 v{t}, v{r}
    v_permlane32_swap_b32 v{r}, v{t}
    v_add_f32 v{r}, v{r}, v{t}
    v_mov_b32 v{t}, v{r}
    v_permlane16_swap_b32 v{r}, v{t}
    v_add_f32 v{r}, v{r}, v{t}
    """)

def consts(a):
    a(f"""
    s_mov_b32 s20, 0x3f803f80
    s_mov_b32 s21, {hx(1.0/512)}
    s_mov_b32 s22, {hx(1e-5)}
    s_mov_b32 s23, 0xffff0000
    s_mov_b32 s24, {hx(GK0)}
    s_mov_b32 s25, {hx(GK1)}
    """)

def den_from_var(a, v):
    rnd_bf16(a, v, v)
    a(f"v_add_f32 v{v}, s22, v{v}")
    rnd_bf16(a, v, v)
    a(f"v_sqrt_f32 v{v}, v{v}")
    rnd_bf16(a, v, v)

def gelu4(a, x, t, out):
    a(f"""
    v_cvt_pk_bf16_f32 v{t}, v{x}, v{x+1}
    v_cvt_pk_bf16_f32 v{t+1}, v{x+2}, v{x+3}
    v_lshlrev_b32 v{x}, 16, v{t}
    v_and_b32 v{x+1}, s23, v{t}
    v_lshlrev_b32 v{x+2}, 16, v{t+1}
    v_and_b32 v{x+3}, s23, v{t+1}
    v_pk_mul_f32 v[{t}:{t+1}], v[{x}:{x+1}], v[{x}:{x+1}]
    v_pk_mul_f32 v[{t+2}:{t+3}], v[{x+2}:{x+3}], v[{x+2}:{x+3}]
    v_pk_fma_f32 v[{t}:{t+1}], v[{t}:{t+1}], s[26:27], v[30:31]
    v_pk_fma_f32 v[{t+2}:{t+3}], v[{t+2}:{t+3}], s[26:27], v[30:31]
    v_pk_mul_f32 v[{t}:{t+1}], v[{t}:{t+1}], v[{x}:{x+1}]
    v_pk_mul_f32 v[{t+2}:{t+3}], v[{t+2}:{t+3}], v[{x+2}:{x+3}]
    v_exp_f32 v{t}, v{t}
    v_exp_f32 v{t+1}, v{t+1}
    v_exp_f32 v{t+2}, v{t+2}
    v_exp_f32 v{t+3}, v{t+3}
    v_add_f32 v{t}, 1.0, v{t}
    v_add_f32 v{t+1}, 1.0, v{t+1}
    v_add_f32 v{t+2}, 1.0, v{t+2}
    v_add_f32 v{t+3}, 1.0, v{t+3}
    v_rcp_f32 v{t}, v{t}
    v_rcp_f32 v{t+1}, v{t+1}
    v_rcp_f32 v{t+2}, v{t+2}
    v_rcp_f32 v{t+3}, v{t+3}
    v_pk_mul_f32 v[{x}:{x+1}], v[{x}:{x+1}], v[{t}:{t+1}]
    v_pk_mul_f32 v[{x+2}:{x+3}], v[{x+2}:{x+3}], v[{t+2}:{t+3}]
    v_cvt_pk_bf16_f32 v{out}, v{x}, v{x+1}
    v_cvt_pk_bf16_f32 v{out+1}, v{x+2}, v{x+3}
    """)

def gelu_consts(a):
    a("s_mov_b32 s26, s25\ns_mov_b32 s27, s25\nv_mov_b32 v30, s24\nv_mov_b32 v31, s24")

def ln_correct(a, x, cs, nm, sc):
    a(f"""
    v_pk_fma_f32 v[{x}:{x+1}], v[{cs}:{cs+1}], v[{nm}:{nm+1}], v[{x}:{x+1}]
    v_pk_fma_f32 v[{x+2}:{x+3}], v[{cs+2}:{cs+3}], v[{nm}:{nm+1}], v[{x+2}:{x+3}]
    v_pk_mul_f32 v[{x}:{x+1}], v[{x}:{x+1}], v[{sc}:{sc+1}]
    v_pk_mul_f32 v[{x+2}:{x+3}], v[{x+2}:{x+3}], v[{sc}:{sc+1}]
    """)

def tile_map_32x8(a):
    a("""
    s_and_b32 s4, s2, 7
    s_lshl_b32 s4, s4, 2
    s_lshr_b32 s5, s2, 6
    s_add_u32 s4, s4, s5
    s_bfe_u32 s5, s2, 0x30003
    """)

def sum_partials(a, dst, n, vaddr, sbase, stride, nparts, tmp):
    pass


def pipe_loop(a, steps, pre_stage, depth=1):
    n = len(steps)
    seen = set()
    def issue_reads(i):
        st = steps[i]["stage"]
        if st not in seen:
            seen.add(st); pre_stage(st)
        for r in steps[i]["reads"]: a(r)
    for i in range(min(depth, n)): issue_reads(i)
    for i in range(n):
        if i + depth < n: issue_reads(i + depth)
        outstanding = sum(len(steps[k]["reads"]) for k in range(i + 1, min(i + depth + 1, n)))
        a(f"s_waitcnt lgkmcnt({min(15, outstanding)})")
        for m in steps[i]["mfmas"]: a(m)
        for m in steps[i].get("extra", []): a(m)

def cs_reduce(a, regs):
    for m in ("quad_perm:[1,0,3,2] row_mask:0xf bank_mask:0xf", "quad_perm:[2,3,0,1] row_mask:0xf bank_mask:0xf", "row_half_mirror row_mask:0xf bank_mask:0xf"):
        for r in regs: a(f"v_add_f32_dpp v{r}, v{r}, v{r} {m}")

def wave_split(a):
    a("s_lshr_b32 s9, s8, 1\ns_and_b32 s10, s8, 1")


def voff128(a, vd, ld):
    a(f"""
    v_lshrrev_b32 v{vd}, 3, v2
    v_bfe_u32 v1, v2, 4, 1
    v_lshlrev_b32 v1, 1, v1
    v_and_b32 v{vd+1}, 7, v2
    v_xor_b32 v1, v{vd+1}, v1
    v_mul_u32_u24 v{vd}, {ld}, v{vd}
    v_lshl_add_u32 v{vd+1}, v1, 4, v{vd}
    v_mov_b32 v{vd}, v{vd+1}
    v_xor_b32 v{vd+1}, 64, v{vd+1}
    """)

def loader(a, name, NST, PF, items, kslot, tail=None):
    def issue(st):
        for (voff, srdr, sg, imm, lds) in items(st):
            a(f"s_add_u32 m0, s15, {lds}")
            if imm: a(f"s_add_u32 s3, s{sg}, {imm}\nbuffer_load_dwordx4 v{voff}, s[{srdr}:{srdr+3}], s3 offen lds")
            else: a(f"buffer_load_dwordx4 v{voff}, s[{srdr}:{srdr+3}], s{sg} offen lds")
    cnt = [len(items(st)) for st in range(NST)]
    a.nst = 0
    stamp(a)
    issued = 0
    def issue_upto(n):
        nonlocal issued
        while issued < min(n, NST):
            issue(issued); issued += 1
    issue_upto(2)
    stamp(a)
    for st in range(NST):
        later = sum(cnt[k] for k in range(st + 1, issued))
        a(f"s_waitcnt vmcnt({later})")
        if st < 4: stamp(a)
        a("s_barrier")
        issue_upto(min(st + PF, issued + 1))
        if tail and st == NST - 1: tail()
    flush_stamps(a, kslot, tid=0)
    a.nst = 0
    a("s_endpgm")

def w4_prefetch(a, half):
    def f():
        a(f"""
        s_load_dwordx2 s[44:45], s[0:1], 104
        s_lshr_b32 s3, s2, 3
        s_lshl_b32 s3, s3, 1
        s_add_u32 s3, s3, {half}
        s_mul_i32 s3, s3, 28672
        s_add_u32 s3, s3, s15
        v_lshlrev_b32 v1, 4, v2
        v_add_u32 v1, s3, v1
        s_waitcnt lgkmcnt(0)
        """)
        for j in range(7):
            a(f"global_load_dwordx4 v[{8+4*j}:{11+4*j}], v1, s[44:45]\nv_add_u32 v1, 0x1000, v1")
    return f

def split3(a):
    a("s_bfe_u32 s9, s8, 0x10001\ns_and_b32 s10, s8, 1\ns_lshr_b32 s11, s8, 2")

def exchange(a, ACC, XB_, pre_writes=(), post_reads=()):
    a(f"""
    s_barrier
    v_lshlrev_b32 v1, 4, v2
    s_lshl_b32 s3, s8, 12
    v_add_u32 v3, s3, v1
    s_xor_b32 s3, s8, 4
    s_lshl_b32 s3, s3, 12
    v_add_u32 v4, s3, v1
    s_cmp_eq_u32 s11, 0
    s_cselect_b64 vcc, -1, 0
    """)
    for r in range(8):
        a(f"v_cndmask_b32 v{XB_+r}, v{ACC+r}, v{ACC+8+r}, vcc\nv_cndmask_b32 v{ACC+r}, v{ACC+8+r}, v{ACC+r}, vcc")
    a(f"ds_write_b128 v3, v[{XB_}:{XB_+3}]\nds_write_b128 v3, v[{XB_+4}:{XB_+7}] offset:1024")
    for w in pre_writes: a(w)
    a("s_waitcnt lgkmcnt(0)\ns_barrier")
    a(f"ds_read_b128 v[{XB_}:{XB_+3}], v4\nds_read_b128 v[{XB_+4}:{XB_+7}], v4 offset:1024")
    for r in post_reads: a(r)
    a("s_waitcnt lgkmcnt(0)")
    for r in range(8): a(f"v_add_f32 v{ACC+r}, v{ACC+r}, v{XB_+r}")

def gen_k3(kernels):
    a = Asm()
    kstart(a)
    WL, HTL = 0, 65536
    a("""
    s_cmp_ge_u32 s2, 256
    s_cbranch_scc1 K3_END
    s_load_dwordx2 s[16:17], s[0:1], 80
    s_load_dwordx2 s[32:33], s[0:1], 128
    """)
    lane_consts(a); tile_map_32x8(a)
    a("s_cmp_ge_u32 s8, 4\ns_cbranch_scc1 K3_C")
    dma_voff128(a, 3, LY.TROW, 5); dma_voff128(a, 4, 1024, 5)
    a(f"""
    s_lshl_b32 s6, s4, 7
    s_mul_i32 s3, s8, {8*LY.TROW}
    s_add_u32 s6, s6, s3
    s_lshl_b32 s7, s5, 7
    s_lshl_b32 s3, s8, 13
    s_add_u32 s7, s7, s3
    s_lshl_b32 s15, s8, 10
    s_waitcnt lgkmcnt(0)
    """)
    srd(a, 36, 32, LY.HT, 512 * LY.TROW)
    srd(a, 40, 16, 0, 512 * 1024)
    def items(ch):
        L = []
        for j in range(4):
            idx = 16 * ch + 4 * j
            L.append((3, 36, 6, idx * 8 * LY.TROW, HTL + 1024 * idx))
            L.append((4, 40, 7, idx * 8 * 1024, WL + 1024 * idx))
        return L
    loader(a, "K3", 4, 4, items, 7)
    a("K3_C:\ns_sub_u32 s8, s8, 4")
    consts(a); split3(a)
    CSR = 104
    a("""
    s_lshl_b32 s7, s5, 8
    s_lshl_b32 s3, s10, 7
    s_add_u32 s7, s7, s3
    v_and_b32 v6, 7, v9
    v_lshlrev_b32 v6, 11, v6
    v_lshl_add_u32 v6, v10, 4, v6
    v_add_u32 v6, s7, v6
    s_waitcnt lgkmcnt(0)
    """)
    stamp(a)
    add64(a, 50, 32, LY.CS1)
    for c in range(2):
        a(f"global_load_dwordx4 v[{CSR+4*c}:{CSR+4*c+3}], v6, s[50:51] offset:{64*c}")
    add64(a, 44, 32, LY.H); add64(a, 46, 32, LY.XB); add64(a, 48, 32, LY.HM)
    a("s_lshl_b32 s12, s9, 2\ns_add_u32 s13, s12, 2\ns_lshl_b32 s14, s10, 2\ns_add_u32 s15, s14, 2\ns_lshl_b32 s28, s11, 12")
    tr_base128(a, 11, 0, HTL, 5, 6, wave_chunk=12)
    tr_base128(a, 12, 0, HTL, 5, 6, wave_chunk=13)
    tr_base128(a, 13, 0, WL, 5, 6, wave_chunk=14)
    tr_base128(a, 14, 0, WL, 5, 6, wave_chunk=15)
    a("""
    s_cmp_eq_u32 s11, 0
    s_cselect_b64 vcc, -1, 0
    v_cndmask_b32 v15, v12, v11, vcc
    s_lshl_b32 s3, s5, 1
    s_add_u32 s3, s3, s10
    s_lshl_b32 s29, s3, 12
    v_add_u32 v15, s29, v15
    """)
    for r in range(11, 15): a(f"v_add_u32 v{r}, s28, v{r}")
    a("""
    s_lshl_b32 s6, s4, 6
    s_lshl_b32 s7, s9, 5
    s_add_u32 s6, s6, s7
    s_lshl_b32 s7, s11, 4
    s_add_u32 s6, s6, s7
    v_add_u32 v7, s6, v9
    v_lshlrev_b32 v7, 10, v7
    v_lshl_add_u32 v8, v10, 4, v7
    s_lshl_b32 s3, s3, 6
    v_add_u32 v8, s3, v8
    s_lshl_b32 s7, s5, 7
    s_lshl_b32 s3, s10, 6
    s_add_u32 s7, s7, s3
    v_lshl_add_u32 v7, v10, 3, v7
    v_add_u32 v7, s7, v7
    """)
    gelu_consts(a)
    HF, WF, ACC, T, XS, SA, ONE = 32, 56, 80, 96, 112, 16, 24
    for r in range(16): a(f"v_mov_b32 v{ACC+r}, 0")
    for r in range(8): a(f"v_mov_b32 v{SA+r}, 0")
    for r in range(4): a(f"v_mov_b32 v{ONE+r}, s20")
    def mk_steps(chh):
        steps = []
        for m in range(8):
            hb = HF + 8 * (m % 3); b = WF + 8 * (m % 3)
            rd = [f"ds_read_b64_tr_b16 v[{hb+4*t+2*h}:{hb+4*t+2*h+1}], v{11+t} offset:{(64*m+4*h)*128}" for t in range(2) for h in range(2)]
            rd += [f"ds_read_b64_tr_b16 v[{b+4*c+2*h}:{b+4*c+2*h+1}], v{13+c} offset:{(64*m+4*h)*128}" for c in range(2) for h in range(2)]
            mf = []
            for t in range(2):
                op = ONE if chh == 0 else hb + 4 * t
                mf.append(f"v_mfma_f32_16x16x32_bf16 v[{SA+4*t}:{SA+4*t+3}], v[{op}:{op+3}], v[{hb+4*t}:{hb+4*t+3}], v[{SA+4*t}:{SA+4*t+3}]")
                for c in range(2):
                    mf.append(f"v_mfma_f32_16x16x32_bf16 v[{ACC+8*t+4*c}:{ACC+8*t+4*c+3}], v[{b+4*c}:{b+4*c+3}], v[{hb+4*t}:{hb+4*t+3}], v[{ACC+8*t+4*c}:{ACC+8*t+4*c+3}]")
            steps.append(dict(stage=m // 2, reads=rd, mfmas=mf))
        return steps
    def pre(ch):
        a("s_barrier")
        if ch == 0: stamp(a)
    a("s_cmp_eq_u32 s10, 1\ns_cbranch_scc1 K3_C1")
    pipe_loop(a, mk_steps(0), pre, depth=1)
    a(f"s_nop 7\nv_mov_b32 v{T}, v{SA}\nv_mov_b32 v{T+1}, v{SA+4}\ns_branch K3_C2\nK3_C1:")
    pipe_loop(a, mk_steps(1), lambda ch: a("s_barrier"), depth=1)
    a(f"""
    s_nop 7
    v_and_b32 v1, 3, v9
    v_lshrrev_b32 v3, 2, v9
    v_cmp_eq_u32 s[52:53], v3, v10
    """)
    for t in range(2):
        a(f"""
        v_mov_b32 v{T+t}, v{SA+4*t}
        v_cmp_eq_u32 vcc, 1, v1
        v_cndmask_b32 v{T+t}, v{T+t}, v{SA+4*t+1}, vcc
        v_cmp_eq_u32 vcc, 2, v1
        v_cndmask_b32 v{T+t}, v{T+t}, v{SA+4*t+2}, vcc
        v_cmp_eq_u32 vcc, 3, v1
        v_cndmask_b32 v{T+t}, v{T+t}, v{SA+4*t+3}, vcc
        v_cndmask_b32 v{T+t}, 0, v{T+t}, s[52:53]
        """)
        xor_reduce(a, T + t, T + 2)
    a("K3_C2:")
    stamp(a)
    a(f"""
    ds_read_b64_tr_b16 v[{HF}:{HF+1}], v15
    ds_read_b64_tr_b16 v[{HF+2}:{HF+3}], v15 offset:512
    s_lshl_b32 s3, s8, 7
    v_lshlrev_b32 v5, 2, v9
    v_add_u32 v6, s3, v5
    s_lshl_b32 s3, s9, 8
    s_lshl_b32 s12, s11, 6
    s_add_u32 s3, s3, s12
    v_add_u32 v5, s3, v5
    """)
    exchange(a, ACC, XS,
             pre_writes=[f"ds_write_b32 v6, v{T} offset:32768", f"ds_write_b32 v6, v{T+1} offset:{32768+64}"],
             post_reads=[f"ds_read_b32 v{T+2*c+p}, v5 offset:{32768 + 512*p + 128*c}" for c in range(2) for p in range(2)])
    a(f"v_add_f32 v{T}, v{T}, v{T+1}\nv_add_f32 v{T+2}, v{T+2}, v{T+3}")
    M, VAR, MB, DEN, RC = XS, XS + 2, XS + 4, XS + 6, XS + 8
    a(f"""
    v_mul_f32 v{M}, s21, v{T}
    v_mul_f32 v{VAR}, s21, v{T+2}
    v_fma_f32 v{VAR}, -v{M}, v{M}, v{VAR}
    v_max_f32 v{VAR}, 0, v{VAR}
    v_mov_b32 v{DEN}, v{VAR}
    """)
    den_from_var(a, DEN)
    rnd_bf16(a, MB, M)
    a(f"""
    v_rcp_f32 v{RC}, v{DEN}
    v_sub_f32 v{M}, v{M}, v{MB}
    v_mul_f32 v{M}, v{M}, v{RC}
    v_mul_f32 v{VAR}, v{VAR}, v{RC}
    v_mul_f32 v{VAR}, v{VAR}, v{RC}
    """)
    rnd_bf16(a, M, M)
    den_from_var(a, VAR)
    a(f"""
    v_fma_f32 v{M}, v{M}, v{DEN}, v{MB}
    v_sub_f32 v{M}, 0, v{M}
    v_mov_b32 v{M+1}, v{M}
    v_mul_f32 v{VAR}, v{VAR}, v{DEN}
    v_rcp_f32 v{VAR}, v{VAR}
    v_sub_f32 v{MB}, 0, v{MB}
    v_mov_b32 v{MB+1}, v{MB}
    v_mov_b32 v{RC+1}, v{RC}
    v_mov_b32 v{VAR+1}, v{VAR}
    s_waitcnt vmcnt(0)
    global_store_dwordx4 v8, v[{HF}:{HF+3}], s[44:45]
    """)
    cs_reduce(a, range(CSR, CSR + 8))
    for c in range(2):
        ln_correct(a, ACC + 4 * c, CSR + 4 * c, M, VAR)
        gelu4(a, ACC + 4 * c, WF + 8 + 8 * c, WF + 2 * c)
        a(f"global_store_dwordx2 v7, v[{WF+2*c}:{WF+2*c+1}], s[48:49] offset:{32*c}")
    for k in range(4):
        src = HF + k; t = T
        a(f"""
        v_lshlrev_b32 v{t}, 16, v{src}
        v_and_b32 v{t+1}, s23, v{src}
        v_pk_add_f32 v[{t}:{t+1}], v[{t}:{t+1}], v[{MB}:{MB+1}]
        v_cvt_pk_bf16_f32 v{t+2}, v{t}, v{t+1}
        v_lshlrev_b32 v{t}, 16, v{t+2}
        v_and_b32 v{t+1}, s23, v{t+2}
        v_pk_mul_f32 v[{t}:{t+1}], v[{t}:{t+1}], v[{RC}:{RC+1}]
        v_cvt_pk_bf16_f32 v{HF+4+k}, v{t}, v{t+1}
        """)
    a(f"global_store_dwordx4 v8, v[{HF+4}:{HF+7}], s[46:47]")
    flush_stamps(a, 3)
    a("K3_END:\ns_endpgm")
    kernels.append(("k3_kernel", 256, 768, 131072, a.lines, 128, 56))

def gen_k4(kernels):
    a = Asm()
    kstart(a)
    WL, AL = 0, 65536
    a("""
    s_cmp_ge_u32 s2, 256
    s_cbranch_scc1 K4_END
    s_load_dwordx2 s[16:17], s[0:1], 88
    s_load_dwordx2 s[32:33], s[0:1], 128
    """)
    lane_consts(a); tile_map_32x8(a)
    a("s_cmp_ge_u32 s8, 4\ns_cbranch_scc1 K4_C")
    dma_voff128(a, 4, 1024, 5)
    a("""
    s_lshl_b32 s3, s8, 2
    v_add_u32 v1, s3, v10
    v_xor_b32 v1, v9, v1
    v_lshlrev_b32 v3, 10, v10
    v_lshl_add_u32 v3, v1, 4, v3
    s_lshl_b32 s7, s5, 7
    s_lshl_b32 s3, s8, 13
    s_add_u32 s7, s7, s3
    s_lshl_b32 s6, s4, 16
    s_lshl_b32 s3, s8, 12
    s_add_u32 s6, s6, s3
    s_lshl_b32 s15, s8, 10
    s_waitcnt lgkmcnt(0)
    """)
    srd(a, 36, 32, LY.HM - 2048, 2052 * 1024)
    srd(a, 40, 16, 0, 512 * 1024)
    def items(kb):
        L = []
        for j in range(5):
            L.append((3, 36, 6, 16384 * j + 256 * kb, AL + 20480 * kb + 4096 * j))
            if j < 4:
                idx = 16 * kb + 4 * j
                L.append((4, 40, 7, idx * 8 * 1024, WL + 1024 * idx))
        return L
    loader(a, "K4", 4, 4, items, 8)
    a("K4_C:\ns_sub_u32 s8, s8, 4")
    consts(a); split3(a)
    a("""
    s_lshl_b32 s6, s4, 6
    s_lshl_b32 s7, s9, 5
    s_add_u32 s6, s6, s7
    s_lshl_b32 s7, s11, 4
    s_add_u32 s6, s6, s7
    v_add_u32 v6, s6, v9
    v_lshlrev_b32 v7, 10, v6
    s_lshl_b32 s7, s5, 7
    s_lshl_b32 s3, s10, 6
    s_add_u32 s7, s7, s3
    v_lshl_add_u32 v7, v10, 3, v7
    v_add_u32 v7, s7, v7
    v_lshlrev_b32 v6, 7, v6
    s_lshr_b32 s7, s7, 3
    v_add_u32 v6, s7, v6
    s_waitcnt lgkmcnt(0)
    """)
    stamp(a)
    add64(a, 46, 32, LY.XB); add64(a, 48, 32, LY.X1); add64(a, 50, 32, LY.ST4)
    AF, WF, ACC, XR, AB, XS = 32, 56, 80, 96, 100, 108
    for c in range(2):
        a(f"global_load_dwordx2 v[{XR+2*c}:{XR+2*c+1}], v7, s[46:47] offset:{32*c}")
    a("s_lshl_b32 s14, s10, 2\ns_add_u32 s15, s14, 2\ns_lshl_b32 s28, s11, 12\ns_lshl_b32 s29, s11, 6")
    tr_base128(a, 13, 0, WL, 5, 3, wave_chunk=14)
    tr_base128(a, 14, 0, WL, 5, 3, wave_chunk=15)
    a("v_add_u32 v13, s28, v13\nv_add_u32 v14, s28, v14")
    for kb, sh in enumerate((-1, 1, -2, 2)):
        a(f"""
        s_lshl_b32 s3, s9, 5
        s_add_u32 s3, s3, {2 + sh}
        v_add_u32 v5, s3, v9
        v_and_b32 v3, 15, v5
        v_xor_b32 v3, v10, v3
        v_lshlrev_b32 v3, 4, v3
        v_lshl_add_u32 v{AB+2*kb}, v5, 8, v3
        v_add_u32 v{AB+2*kb}, {AL + 20480*kb}, v{AB+2*kb}
        v_xor_b32 v{AB+2*kb}, s29, v{AB+2*kb}
        v_xor_b32 v{AB+2*kb+1}, 0x80, v{AB+2*kb}
        """)
    for r in range(16): a(f"v_mov_b32 v{ACC+r}, 0")
    steps = []
    for m in range(8):
        b = WF + 8 * (m % 3); af = AF + 8 * (m % 3)
        rd = [f"ds_read_b128 v[{af+4*t}:{af+4*t+3}], v{AB+m} offset:{4096*t}" for t in range(2)]
        rd += [f"ds_read_b64_tr_b16 v[{b+4*c+2*h}:{b+4*c+2*h+1}], v{13+c} offset:{(64*m+4*h)*128}" for c in range(2) for h in range(2)]
        mf = [f"v_mfma_f32_16x16x32_bf16 v[{ACC+8*t+4*c}:{ACC+8*t+4*c+3}], v[{b+4*c}:{b+4*c+3}], v[{af+4*t}:{af+4*t+3}], v[{ACC+8*t+4*c}:{ACC+8*t+4*c+3}]" for t in range(2) for c in range(2)]
        steps.append(dict(stage=m // 2, reads=rd, mfmas=mf))
    def pre(ch):
        a("s_barrier")
        if ch == 0: stamp(a)
    pipe_loop(a, steps, pre, depth=1)
    stamp(a)
    exchange(a, ACC, XS)
    a("s_waitcnt vmcnt(0)\nv_mov_b32 v24, 0\nv_mov_b32 v25, 0")
    for c in range(2):
        x = ACC + 4 * c
        a(f"""
        v_cvt_pk_bf16_f32 v26, v{x}, v{x+1}
        v_cvt_pk_bf16_f32 v27, v{x+2}, v{x+3}
        v_lshlrev_b32 v{x}, 16, v26
        v_and_b32 v{x+1}, s23, v26
        v_lshlrev_b32 v{x+2}, 16, v27
        v_and_b32 v{x+3}, s23, v27
        v_lshlrev_b32 v26, 16, v{XR+2*c}
        v_and_b32 v27, s23, v{XR+2*c}
        v_lshlrev_b32 v28, 16, v{XR+2*c+1}
        v_and_b32 v29, s23, v{XR+2*c+1}
        v_pk_add_f32 v[{x}:{x+1}], v[{x}:{x+1}], v[26:27]
        v_pk_add_f32 v[{x+2}:{x+3}], v[{x+2}:{x+3}], v[28:29]
        v_cvt_pk_bf16_f32 v{WF+2*c}, v{x}, v{x+1}
        v_cvt_pk_bf16_f32 v{WF+2*c+1}, v{x+2}, v{x+3}
        global_store_dwordx2 v7, v[{WF+2*c}:{WF+2*c+1}], s[48:49] offset:{32*c}
        """)
        for k in range(2):
            a(f"v_dot2_f32_bf16 v24, v{WF+2*c+k}, s20, v24\nv_dot2_f32_bf16 v25, v{WF+2*c+k}, v{WF+2*c+k}, v25")
    xor_reduce(a, 24, 26); xor_reduce(a, 25, 26)
    a("""
    v_cmp_gt_u32 vcc, 16, v2
    s_and_saveexec_b64 s[42:43], vcc
    global_store_dwordx2 v6, v[24:25], s[50:51]
    s_mov_b64 exec, s[42:43]
    """)
    flush_stamps(a, 4)
    a("K4_END:\ns_endpgm")
    kernels.append(("k4_kernel", 256, 768, 65536 + 4 * 20480, a.lines, 128, 56))

def gen_k5(kernels):
    a = Asm()
    kstart(a)
    a("""
    s_cmp_ge_u32 s2, 224
    s_cbranch_scc1 K5_END
    s_load_dwordx2 s[16:17], s[0:1], 96
    s_load_dwordx2 s[32:33], s[0:1], 128
    """)
    lane_consts(a)
    a(f"""
    s_and_b32 s4, s2, 7
    s_lshl_b32 s4, s4, 1
    s_lshr_b32 s5, s2, 3
    s_cmp_ge_u32 s5, 14
    s_cselect_b32 s3, 1, 0
    s_add_u32 s4, s4, s3
    s_mul_i32 s3, s3, 14
    s_sub_u32 s5, s5, s3
    s_cmp_ge_u32 s8, 4
    s_cbranch_scc1 K5_C
    s_bfe_u32 s3, s8, 0x10001
    s_lshl_b32 s3, s3, 3
    v_lshlrev_b32 v1, 1, v10
    v_or_b32 v1, s3, v1
    v_xor_b32 v1, v9, v1
    v_mul_u32_u24 v4, 3584, v10
    v_lshl_add_u32 v4, v1, 4, v4
    v_lshrrev_b32 v3, 3, v2
    v_and_b32 v1, 7, v2
    v_xor_b32 v1, v3, v1
    v_lshlrev_b32 v3, 10, v3
    v_lshl_add_u32 v3, v1, 4, v3
    s_lshl_b32 s7, s5, 8
    s_mul_i32 s3, s8, 14336
    s_add_u32 s7, s7, s3
    s_lshl_b32 s6, s4, 17
    s_lshl_b32 s3, s8, 13
    s_add_u32 s6, s6, s3
    s_lshl_b32 s15, s8, 10
    s_waitcnt lgkmcnt(0)
    """)
    srd(a, 36, 32, LY.X1, 2048 * 1024)
    srd(a, 40, 16, 0, 512 * 3584)
    NST, NBUF, PF = 8, 5, 4
    def items(st):
        buf = 32768 * (st % NBUF); L = []
        for j in range(4):
            L.append((3, 36, 6, 32768 * j + 128 * st, buf + 4096 * j))
            L.append((4, 40, 7, (64 * st + 16 * j) * 3584, buf + 16384 + 4096 * j))
        return L
    loader(a, "K5", NST, PF, items, 9)
    a("K5_C:\ns_sub_u32 s8, s8, 4")
    consts(a); wave_split(a)
    AFR, ACC, WF, CSR, STR, WB, AB = 32, 48, 80, 112, 128, 144, 156
    T = WF + 16
    a("""
    s_lshl_b32 s6, s4, 7
    s_lshl_b32 s7, s9, 5
    s_add_u32 s6, s6, s7
    v_add_u32 v7, s6, v9
    v_lshlrev_b32 v8, 7, v7
    v_lshl_add_u32 v8, v10, 5, v8
    s_lshl_b32 s7, s5, 9
    s_lshl_b32 s3, s10, 8
    s_add_u32 s7, s7, s3
    v_and_b32 v6, 7, v9
    v_mul_u32_u24 v6, 7168, v6
    v_lshl_add_u32 v6, v10, 4, v6
    v_add_u32 v6, s7, v6
    s_waitcnt lgkmcnt(0)
    """)
    stamp(a)
    add64(a, 46, 32, LY.ST4); add64(a, 48, 32, LY.G); add64(a, 50, 32, LY.CS3)
    for i in range(2):
        a(f"global_load_dwordx4 v[{STR+8*i}:{STR+8*i+3}], v8, s[46:47] offset:{2048*i}\nglobal_load_dwordx4 v[{STR+8*i+4}:{STR+8*i+7}], v8, s[46:47] offset:{2048*i+16}")
    for c in range(4):
        a(f"global_load_dwordx4 v[{CSR+4*c}:{CSR+4*c+3}], v6, s[50:51] offset:{64*c}")
    a("""
    v_lshrrev_b32 v5, 2, v9
    v_lshlrev_b32 v6, 1, v5
    v_and_b32 v1, 1, v10
    v_lshl_or_b32 v6, v1, 3, v6
    v_lshl_add_u32 v5, v10, 3, v5
    v_lshlrev_b32 v5, 8, v5
    v_and_b32 v1, 1, v9
    v_lshl_add_u32 v5, v1, 3, v5
    v_add_u32 v5, 0x4000, v5
    v_bfe_u32 v1, v9, 1, 1
    s_lshl_b32 s3, s10, 3
    v_add_u32 v1, s3, v1
    """)
    for c in range(4):
        a(f"""
        v_add_u32 v{WB+c}, {2*c}, v1
        v_xor_b32 v{WB+c}, v{WB+c}, v6
        v_lshl_add_u32 v{WB+c}, v{WB+c}, 4, v5
        v_add_u32 v{WB+4+c}, 0x10000, v{WB+c}
        v_add_u32 v{WB+8+c}, 0x20000, v{WB+c}
        """)
    a(f"""
    v_and_b32 v5, 7, v9
    v_xor_b32 v5, v10, v5
    v_lshlrev_b32 v5, 4, v5
    s_lshl_b32 s3, s9, 12
    v_lshl_add_u32 v{AB}, v9, 7, v5
    v_add_u32 v{AB}, s3, v{AB}
    v_xor_b32 v{AB+1}, 64, v{AB}
    """)
    for gp in range(1, 3):
        for sp in range(2): a(f"v_add_u32 v{AB+2*gp+sp}, {0x10000*gp}, v{AB+sp}")
    a("""
    v_mul_u32_u24 v7, 3584, v7
    v_lshl_add_u32 v7, v10, 3, v7
    s_lshl_b32 s7, s5, 8
    s_lshl_b32 s3, s10, 7
    s_add_u32 s7, s7, s3
    v_add_u32 v7, s7, v7
    v_add_u32 v6, 57344, v7
    """)
    gelu_consts(a)
    for r in range(32): a(f"v_mov_b32 v{ACC+r}, 0")
    def ln_params(S):
        L = Asm()
        L(f"""
        v_add_f32 v{S}, v{S}, v{S+2}
        v_add_f32 v{S+1}, v{S+1}, v{S+3}
        v_add_f32 v{S+4}, v{S+4}, v{S+6}
        v_add_f32 v{S+5}, v{S+5}, v{S+7}
        v_add_f32 v{S}, v{S}, v{S+4}
        v_add_f32 v{S+1}, v{S+1}, v{S+5}
        """)
        xor_reduce(L, S, S + 2); xor_reduce(L, S + 1, S + 2)
        L(f"""
        v_mul_f32 v{S}, s21, v{S}
        v_mul_f32 v{S+2}, s21, v{S+1}
        v_fma_f32 v{S+2}, -v{S}, v{S}, v{S+2}
        v_max_f32 v{S+2}, 0, v{S+2}
        """)
        den_from_var(L, S + 2)
        rnd_bf16(L, S, S)
        L(f"""
        v_rcp_f32 v{S+2}, v{S+2}
        v_sub_f32 v{S}, 0, v{S}
        v_mov_b32 v{S+1}, v{S}
        v_mov_b32 v{S+3}, v{S+2}
        """)
        return L.lines
    steps = []
    for st in range(NST):
        buf = st % NBUF; gp = buf >> 1; so = 32768 * (buf & 1)
        for sp in range(2):
            i = 2 * st + sp; b = WF + 16 * (i % 2); af = AFR + 8 * (i % 2)
            rd = [f"ds_read_b128 v[{af+4*t}:{af+4*t+3}], v{AB+2*gp+sp} offset:{so + 2048*t}" for t in range(2)]
            rd += [f"ds_read_b64_tr_b16 v[{b+4*c+2*h}:{b+4*c+2*h+1}], v{WB+4*gp+c} offset:{so + (32*sp+4*h)*256}" for c in range(4) for h in range(2)]
            mf = [f"v_mfma_f32_16x16x32_bf16 v[{ACC+16*t+4*c}:{ACC+16*t+4*c+3}], v[{b+4*c}:{b+4*c+3}], v[{af+4*t}:{af+4*t+3}], v[{ACC+16*t+4*c}:{ACC+16*t+4*c+3}]" for c in range(4) for t in range(2)]
            ex = []
            if i == 8: ex = ["    s_waitcnt vmcnt(0)"] + ln_params(STR)
            if i == 9: ex = ln_params(STR + 8)
            if i == 10:
                L = Asm(); cs_reduce(L, range(CSR, CSR + 16)); ex = L.lines
            steps.append(dict(stage=st, reads=rd, mfmas=mf, extra=ex))
    def pre(st):
        a("s_barrier")
        if st in (0, 1, 4, 7): stamp(a)
    pipe_loop(a, steps, pre, depth=1)
    stamp(a)
    for t in range(2):
        for c in range(4):
            x0 = ACC + 16 * t + 4 * c
            ln_correct(a, x0, CSR + 4 * c, STR + 8 * t, STR + 8 * t + 2)
            o = WF + 2 * c
            gelu4(a, x0, T + 8 * (c & 1), o)
            a(f"global_store_dwordx2 v{7 if t == 0 else 6}, v[{o}:{o+1}], s[48:49] offset:{32*c}")
    flush_stamps(a, 5)
    a("K5_END:\ns_endpgm")
    kernels.append(("k5_kernel", 224, 768, 163840, a.lines, 164, 56))

def gen_k6(kernels):
    a = Asm()
    kstart(a)
    a("""
    s_cmp_ge_u32 s2, 256
    s_cbranch_scc1 K6_END
    s_load_dwordx4 s[16:19], s[0:1], 104
    s_load_dwordx2 s[32:33], s[0:1], 128
    """)
    lane_consts(a); tile_map_32x8(a)
    a("s_cmp_ge_u32 s8, 4\ns_cbranch_scc1 K6_C")
    dma_voff128(a, 4, 1024, 5)
    a(f"""
    s_lshl_b32 s3, s8, 2
    v_add_u32 v1, s3, v10
    v_xor_b32 v1, v9, v1
    v_mul_u32_u24 v3, 3584, v10
    v_lshl_add_u32 v3, v1, 4, v3
    s_lshl_b32 s7, s5, 7
    s_lshl_b32 s3, s8, 13
    s_add_u32 s7, s7, s3
    s_mul_i32 s6, s4, {64*3584}
    s_mul_i32 s3, s8, {4*3584}
    s_add_u32 s6, s6, s3
    s_lshl_b32 s15, s8, 10
    s_waitcnt lgkmcnt(0)
    """)
    srd(a, 36, 32, LY.G, 2048 * 3584)
    srd(a, 40, 16, 0, 1792 * 1024)
    NST, NBUF, PF = 14, 5, 4
    def items(st):
        buf = 32768 * (st % NBUF); L = []
        for j in range(4):
            L.append((3, 36, 6, 16 * 3584 * j + 256 * st, buf + 4096 * j))
            L.append((4, 40, 7, (128 * st + 32 * j) * 1024, buf + 16384 + 4096 * j))
        return L
    loader(a, "K6", NST, PF, items, 10)
    a("K6_C:\ns_sub_u32 s8, s8, 4")
    split3(a)
    a("""
    s_lshl_b32 s6, s4, 6
    s_lshl_b32 s7, s9, 5
    s_add_u32 s6, s6, s7
    s_lshl_b32 s7, s11, 4
    s_add_u32 s6, s6, s7
    v_add_u32 v7, s6, v9
    v_lshlrev_b32 v7, 10, v7
    s_lshl_b32 s7, s5, 7
    s_lshl_b32 s3, s10, 6
    s_add_u32 s7, s7, s3
    v_lshl_add_u32 v7, v10, 3, v7
    v_add_u32 v7, s7, v7
    s_waitcnt lgkmcnt(0)
    """)
    stamp(a)
    add64(a, 44, 32, LY.H); add64(a, 46, 32, LY.X1)
    AF, WF, ACC, XR, AB, XS = 32, 56, 80, 96, 104, 112
    for c in range(2):
        a(f"global_load_dwordx2 v[{XR+2*c}:{XR+2*c+1}], v7, s[46:47] offset:{32*c}")
        a(f"global_load_dwordx2 v[{XR+4+2*c}:{XR+4+2*c+1}], v7, s[44:45] offset:{32*c}")
    a("s_lshl_b32 s14, s10, 2\ns_add_u32 s15, s14, 2\ns_lshl_b32 s28, s11, 12\ns_lshl_b32 s29, s11, 6")
    tr_base128(a, 12, 0, 16384, 5, 6, wave_chunk=14)
    tr_base128(a, 13, 0, 16384, 5, 6, wave_chunk=15)
    for c in range(2): a(f"v_add_u32 v{12+c}, s28, v{12+c}\nv_add_u32 v{14+c}, 0x10000, v{12+c}\nv_add_u32 v{16+c}, 0x20000, v{12+c}")
    a(f"""
    v_xor_b32 v5, v10, v9
    v_lshlrev_b32 v5, 4, v5
    s_lshl_b32 s3, s9, 13
    v_lshl_add_u32 v{AB}, v9, 8, v5
    v_add_u32 v{AB}, s3, v{AB}
    v_xor_b32 v{AB}, s29, v{AB}
    v_xor_b32 v{AB+1}, 0x80, v{AB}
    """)
    for gp in range(1, 3):
        for q in range(2): a(f"v_add_u32 v{AB+2*gp+q}, {0x10000*gp}, v{AB+q}")
    for r in range(16): a(f"v_mov_b32 v{ACC+r}, 0")
    a("s_mov_b32 s23, 0xffff0000")
    steps = []
    for st in range(NST):
        buf = st % NBUF; gp = buf >> 1; so = 32768 * (buf & 1)
        for q in range(2):
            i = 2 * st + q; b = WF + 8 * (i % 3); af = AF + 8 * (i % 3)
            rd = [f"ds_read_b128 v[{af+4*t}:{af+4*t+3}], v{AB+2*gp+q} offset:{so + 4096*t}" for t in range(2)]
            rd += [f"ds_read_b64_tr_b16 v[{b+4*c+2*h}:{b+4*c+2*h+1}], v{12+2*gp+c} offset:{so + (64*q+4*h)*128}" for c in range(2) for h in range(2)]
            mf = [f"v_mfma_f32_16x16x32_bf16 v[{ACC+8*t+4*c}:{ACC+8*t+4*c+3}], v[{b+4*c}:{b+4*c+3}], v[{af+4*t}:{af+4*t+3}], v[{ACC+8*t+4*c}:{ACC+8*t+4*c+3}]" for t in range(2) for c in range(2)]
            steps.append(dict(stage=st, reads=rd, mfmas=mf))
    def pre(st):
        a("s_barrier")
        if st in (0, 1, 4, 8, 12): stamp(a)
    pipe_loop(a, steps, pre, depth=1)
    stamp(a)
    exchange(a, ACC, XS)
    a("s_waitcnt vmcnt(0)")
    for c in range(2):
        x = ACC + 4 * c
        a(f"""
        v_cvt_pk_bf16_f32 v24, v{x}, v{x+1}
        v_cvt_pk_bf16_f32 v25, v{x+2}, v{x+3}
        v_lshlrev_b32 v{x}, 16, v24
        v_and_b32 v{x+1}, s23, v24
        v_lshlrev_b32 v{x+2}, 16, v25
        v_and_b32 v{x+3}, s23, v25
        v_lshlrev_b32 v24, 16, v{XR+2*c}
        v_and_b32 v25, s23, v{XR+2*c}
        v_lshlrev_b32 v26, 16, v{XR+2*c+1}
        v_and_b32 v27, s23, v{XR+2*c+1}
        v_pk_add_f32 v[{x}:{x+1}], v[{x}:{x+1}], v[24:25]
        v_pk_add_f32 v[{x+2}:{x+3}], v[{x+2}:{x+3}], v[26:27]
        v_cvt_pk_bf16_f32 v24, v{x}, v{x+1}
        v_cvt_pk_bf16_f32 v25, v{x+2}, v{x+3}
        v_lshlrev_b32 v{x}, 16, v24
        v_and_b32 v{x+1}, s23, v24
        v_lshlrev_b32 v{x+2}, 16, v25
        v_and_b32 v{x+3}, s23, v25
        v_lshlrev_b32 v24, 16, v{XR+4+2*c}
        v_and_b32 v25, s23, v{XR+4+2*c}
        v_lshlrev_b32 v26, 16, v{XR+4+2*c+1}
        v_and_b32 v27, s23, v{XR+4+2*c+1}
        v_pk_add_f32 v[{x}:{x+1}], v[{x}:{x+1}], v[24:25]
        v_pk_add_f32 v[{x+2}:{x+3}], v[{x+2}:{x+3}], v[26:27]
        v_cvt_pk_bf16_f32 v{WF+2*c}, v{x}, v{x+1}
        v_cvt_pk_bf16_f32 v{WF+2*c+1}, v{x+2}, v{x+3}
        global_store_dwordx2 v7, v[{WF+2*c}:{WF+2*c+1}], s[18:19] offset:{32*c}
        """)
    flush_stamps(a, 6)
    a("K6_END:\ns_endpgm")
    kernels.append(("k6_kernel", 256, 768, 163840, a.lines, 128, 56))

def gen_all(kernels):
    gen_k3(kernels); gen_k4(kernels); gen_k5(kernels); gen_k6(kernels)
```

```python
UROW = 2176
UT = 0
XT = 0x280000
TROW = 4224
KOFF = 2080
KLEN = 2560
KH = 0x480000
HT = 0x800000
H  = 0xC00000
XB = 0xE00000
HM = 0x1001000
X1 = 0x1210000
G  = 0x1420000
CS1 = 0x1C00000
CS3 = 0x1C04000
ST4 = 0x1C20000
ST1 = 0x1C80000
```

```python
import sys, struct
sys.path.insert(0, "dev")
from asmlib import Asm, fix_hazards, stamp, flush_stamps, kstart, STAMPS
import layout as LY

NAME = "sequential_preLN__ssm_conv_s4__mixer_s_mlp__prompt"
def f2u(f): return struct.unpack("<I", struct.pack("<f", f))[0]
def hx(f): return "0x%08x" % f2u(f)
L2E = 1.4426950408889634
L2E_HI = struct.unpack("<f", struct.pack("<f", L2E))[0]
L2E_LO = L2E - L2E_HI

import os
CODE_PIECES = int(os.environ.get('CODEPF', '12'))
kernels = []

def add64(a, d, s, imm):
    a(f"s_add_u32 s{d}, s{s}, {imm}\ns_addc_u32 s{d+1}, s{s+1}, 0")

def wave_reduce_sum(a, regs):
    for m in ("row_shr:1 row_mask:0xf bank_mask:0xf", "row_shr:2 row_mask:0xf bank_mask:0xf", "row_shr:4 row_mask:0xf bank_mask:0xf",
              "row_shr:8 row_mask:0xf bank_mask:0xf", "row_bcast:15 row_mask:0xa bank_mask:0xf", "row_bcast:31 row_mask:0xc bank_mask:0xf"):
        for r in regs:
            a(f"v_add_f32_dpp v{r}, v{r}, v{r} {m}")

def rnd_bf16(a, d, s):
    a(f"v_cvt_pk_bf16_f32 v{d}, v{s}, v{s}\nv_lshlrev_b32 v{d}, 16, v{d}")

def gen_k1():
    a = Asm()
    kstart(a)
    RED = 0
    a(f"""
    s_cmp_ge_u32 s2, 256
    s_cbranch_scc1 K1_AUX
    s_load_dwordx2 s[16:17], s[0:1], 0
    s_load_dwordx2 s[32:33], s[0:1], 128
    v_lshlrev_b32 v1, 2, v0
    v_add_u32 v2, 0x1000, v1
    v_mov_b32 v3, 0
    v_mov_b32 v4, 0x1000
    v_lshrrev_b32 v6, 6, v0
    v_readfirstlane_b32 s8, v6
    s_lshl_b32 s3, s2, 13
    s_waitcnt lgkmcnt(0)
    s_add_u32 s34, s16, s3
    s_addc_u32 s35, s17, 0
    """)
    stamp(a)
    for r in range(8):
        a(f"global_load_dword v{10+r}, v{1 if r < 4 else 2}, s[34:35] offset:{(r & 3) * 1024}")
    for r in range(8):
        a(f"global_load_ushort v{20+r}, v{3 if r < 4 else 4}, s[34:35] offset:{(r & 3) * 1024}")
    UB = LY.UROW * 2
    add64(a, 36, 32, LY.UT); add64(a, 38, 32, LY.XT)
    a(f"""
    v_and_b32 v1, 15, v0
    v_bfe_u32 v2, v0, 4, 1
    v_lshlrev_b32 v3, 4, v1
    v_add_u32 v4, 0x1000, v3
    v_cmp_gt_u32 vcc, 4, v1
    v_cndmask_b32 v3, v4, v3, vcc
    s_lshl_b32 s3, s2, 1
    v_add_u32 v2, s3, v2
    v_mul_u32_u24 v2, {UB}, v2
    v_add_u32 v3, v2, v3
    v_mov_b32 v28, 0
    v_mov_b32 v29, 0
    v_mov_b32 v30, 0
    v_mov_b32 v31, 0
    v_cmp_gt_u32 vcc, 32, v0
    s_and_saveexec_b64 s[42:43], vcc
    global_store_dwordx4 v3, v[28:31], s[36:37]
    s_mov_b64 exec, s[42:43]
    s_cmp_lg_u32 s2, 0
    s_cbranch_scc1 K1_NOZ
    v_lshlrev_b32 v3, 4, v0
    v_add_u32 v4, {LY.HM - 2048}, v3
    v_add_u32 v3, {LY.HM + 2048*1024 - 2048}, v3
    v_cmp_gt_u32 vcc, 128, v0
    v_cndmask_b32 v3, v3, v4, vcc
    global_store_dwordx4 v3, v[28:31], s[32:33]
    K1_NOZ:
    s_lshl_b32 s3, s2, 4
    v_mul_u32_u24 v1, {2*UB}, v0
    v_add_u32 v1, s3, v1
    v_add_u32 v2, {UB}, v1
    v_mul_u32_u24 v3, {2*LY.TROW}, v0
    v_add_u32 v3, s3, v3
    v_add_u32 v4, {LY.TROW}, v3
    s_mov_b32 s13, 0x05040100
    s_mov_b32 s14, 0x07060302
    s_mov_b32 s11, {hx(1.0/512)}
    s_mov_b32 s12, {hx(1e-5)}
    s_lshl_b32 s10, s8, 6
    v_mov_b32 v9, s10
    s_waitcnt vmcnt(1)
    """)
    stamp(a)
    for q in range(4):
        a(f"v_perm_b32 v{124+q}, v{11+2*q}, v{10+2*q}, s13")
        a(f"v_perm_b32 v{128+q}, v{11+2*q}, v{10+2*q}, s14")
    a("global_store_dwordx4 v3, v[124:127], s[38:39]\nglobal_store_dwordx4 v4, v[128:131], s[38:39]")
    for r in range(8):
        a(f"""
        v_lshlrev_b32 v{20+r}, 16, v{20+r}
        v_lshlrev_b32 v{70+2*r}, 16, v{10+r}
        v_and_b32 v{71+2*r}, 0xffff0000, v{10+r}
        """)
    for r in range(8):
        a(f"""
        v_sub_f32 v98, v{70+2*r}, v{20+r}
        v_sub_f32 v99, v{71+2*r}, v{20+r}
        v_add_f32 v{90+r}, v98, v99
        v_mul_f32 v{100+r}, v98, v98
        v_fmac_f32 v{100+r}, v99, v99
        """)
    wave_reduce_sum(a, list(range(90, 98)) + list(range(100, 108)))
    a(f"""
    s_mov_b32 exec_lo, 0
    s_mov_b32 exec_hi, 0x80000000
    ds_write_b128 v9, v[90:93] offset:{RED}
    ds_write_b128 v9, v[94:97] offset:{RED + 16}
    ds_write_b128 v9, v[100:103] offset:{RED + 32}
    ds_write_b128 v9, v[104:107] offset:{RED + 48}
    s_mov_b64 exec, -1
    v_mov_b32 v9, 0
    s_waitcnt lgkmcnt(0)
    s_barrier
    """)
    for w in range(4):
        for hh in range(4):
            a(f"ds_read_b128 v[{132+16*w+4*hh}:{135+16*w+4*hh}], v9 offset:{RED + 64*w + 16*hh}")
    a("s_waitcnt lgkmcnt(0)")
    for r in range(16):
        a(f"v_add_f32 v{132+r}, v{132+r}, v{148+r}\nv_add_f32 v{164+r}, v{164+r}, v{180+r}")
    for r in range(16):
        a(f"v_add_f32 v{132+r}, v{132+r}, v{164+r}")
    for r in range(8):
        a(f"""
        v_mul_f32 v{132+r}, s11, v{132+r}
        v_mul_f32 v{100+r}, s11, v{140+r}
        v_fma_f32 v{100+r}, -v{132+r}, v{132+r}, v{100+r}
        v_max_f32 v{100+r}, 0, v{100+r}
        v_add_f32 v{140+r}, v{20+r}, v{132+r}
        """)
        rnd_bf16(a, 100 + r, 100 + r)
        a(f"v_add_f32 v{100+r}, s12, v{100+r}")
        rnd_bf16(a, 100 + r, 100 + r)
        a(f"v_sqrt_f32 v{100+r}, v{100+r}")
        rnd_bf16(a, 100 + r, 100 + r)
        a(f"v_rcp_f32 v{108+r}, v{100+r}")
        rnd_bf16(a, 140 + r, 140 + r)
    for r in range(8):
        for e in range(2):
            x = 70 + 2 * r + e
            a(f"v_sub_f32 v{x}, v{x}, v{140+r}")
            rnd_bf16(a, x, x)
            a(f"""
            v_mul_f32 v98, v{x}, v{108+r}
            v_fma_f32 v99, -v98, v{100+r}, v{x}
            v_fma_f32 v{x}, v99, v{108+r}, v98
            """)
    for q in range(4):
        a(f"v_cvt_pk_bf16_f32 v{116+q}, v{70+4*q}, v{72+4*q}")
        a(f"v_cvt_pk_bf16_f32 v{120+q}, v{71+4*q}, v{73+4*q}")
    a(f"""
    global_store_dwordx4 v1, v[116:119], s[36:37] offset:64
    global_store_dwordx4 v2, v[120:123], s[36:37] offset:64
    """)
    flush_stamps(a, 1)
    a("s_endpgm")
    a(f"""
    K1_AUX:
    s_cmp_ge_u32 s2, 512
    s_cbranch_scc1 K1_END
    s_load_dwordx8 s[16:23], s[0:1], 80
    s_load_dwordx2 s[32:33], s[0:1], 128
    s_sub_u32 s3, s2, 256
    s_getpc_b64 s[44:45]
    K1_PCBASE:
    s_lshr_b32 s4, s3, 3
    s_lshl_b32 s4, s4, 12
    v_lshlrev_b32 v1, 4, v0
    v_add_u32 v1, s4, v1
    v_cmp_gt_u32 vcc, K6_END-K1_PCBASE-16, v1
    s_and_saveexec_b64 s[42:43], vcc
    s_cbranch_execz K1_NOCODE
    global_load_dwordx4 v[80:83], v1, s[44:45]
    K1_NOCODE:
    s_mov_b64 exec, -1
    s_cmp_ge_u32 s3, 144
    s_cbranch_scc1 K1_PF
    s_mul_hi_u32 s9, s3, {(2**32 + 17)//18}
    s_mul_i32 s4, s9, 18
    s_sub_u32 s3, s3, s4
    v_lshrrev_b32 v1, 4, v0
    v_and_b32 v2, 15, v0
    s_cmp_lt_u32 s3, 4
    s_mov_b32 s4, 1024
    s_mov_b32 s6, {LY.CS1}
    s_mov_b32 s10, 2048
    s_cselect_b32 s4, s4, 3584
    s_cselect_b32 s5, 0, 4
    s_cselect_b32 s6, s6, {LY.CS3}
    s_cselect_b32 s10, s10, 7168
    s_waitcnt lgkmcnt(0)
    s_cselect_b32 s24, s16, s20
    s_cselect_b32 s25, s17, s21
    s_sub_u32 s3, s3, s5
    s_lshl_b32 s7, s9, 6
    v_add_u32 v1, s7, v1
    v_mul_lo_u32 v1, v1, s4
    v_lshl_add_u32 v1, v2, 4, v1
    s_lshl_b32 s7, s3, 8
    v_add_u32 v1, s7, v1
    s_lshl_b32 s4, s4, 4
    """)
    for j in range(4):
        a(f"global_load_dwordx4 v[{16+4*j}:{19+4*j}], v1, s[24:25]")
        if j < 3: a("v_add_u32 v1, s4, v1")
    for r in range(8): a(f"v_mov_b32 v{4+r}, 0")
    for j in range(4):
        a(f"s_waitcnt vmcnt({3-j})")
        for q in range(4):
            a(f"""
            v_lshlrev_b32 v12, 16, v{16+4*j+q}
            v_and_b32 v13, 0xffff0000, v{16+4*j+q}
            v_add_f32 v{4+2*q}, v{4+2*q}, v12
            v_add_f32 v{5+2*q}, v{5+2*q}, v13
            """)
    a(f"""
    v_lshlrev_b32 v1, 5, v0
    ds_write_b128 v1, v[4:7]
    ds_write_b128 v1, v[8:11] offset:16
    s_waitcnt lgkmcnt(0)
    s_barrier
    v_cmp_gt_u32 vcc, 128, v0
    s_and_saveexec_b64 s[42:43], vcc
    s_cbranch_execz K1_END
    v_lshlrev_b32 v1, 2, v0
    """)
    for j in range(16):
        a(f"ds_read_b32 v{16+j}, v1 offset:{512*j}")
    a("s_waitcnt lgkmcnt(0)")
    for st in (8, 4, 2, 1):
        for j in range(st): a(f"v_add_f32 v{16+j}, v{16+j}, v{16+j+st}")
    a(f"""
    s_lshl_b32 s7, s3, 9
    s_add_u32 s6, s6, s7
    s_mul_i32 s7, s9, s10
    s_add_u32 s6, s6, s7
    v_add_u32 v1, s6, v1
    global_store_dword v1, v16, s[32:33]
    s_endpgm
    K1_PF:
    s_sub_u32 s3, s3, 144
    s_waitcnt lgkmcnt(0)
    s_mov_b32 s24, s18
    s_mov_b32 s25, s19
    s_mov_b32 s26, {512*1024}
    s_mov_b32 s27, 0x00020000
    s_mov_b32 s28, s22
    s_mov_b32 s29, s23
    s_mov_b32 s30, {1792*1024}
    s_mov_b32 s31, 0x00020000
    s_mul_i32 s4, s3, 8192
    v_lshlrev_b32 v1, 4, v0
    v_add_u32 v1, s4, v1
    v_add_u32 v2, 0x1000, v1
    buffer_load_dwordx4 v[4:7], v1, s[24:27], 0 offen
    buffer_load_dwordx4 v[20:23], v2, s[24:27], 0 offen
    s_mul_i32 s4, s3, 16384
    v_lshlrev_b32 v1, 4, v0
    v_add_u32 v1, s4, v1
    v_add_u32 v2, 0x1000, v1
    v_add_u32 v3, 0x2000, v1
    v_add_u32 v24, 0x3000, v1
    buffer_load_dwordx4 v[8:11], v1, s[28:31], 0 offen
    buffer_load_dwordx4 v[12:15], v2, s[28:31], 0 offen
    buffer_load_dwordx4 v[16:19], v3, s[28:31], 0 offen
    buffer_load_dwordx4 v[28:31], v24, s[28:31], 0 offen
    s_waitcnt vmcnt(0)
    K1_END:
    s_endpgm
    """)
    kernels.append(("k1_kernel", 512, 256, 8192, a.lines, 200, 48))

def emit(kernels):
    out = []
    hdr = open(f"cdna_kernels/{NAME}.s.ref").read().split("\n")
    for ln in hdr:
        if ln.startswith("; @launch") or not ln.startswith(";"):
            break
        if "Override launch geometry" in ln or "grid=ceil" in ln: continue
        out.append(ln)
    kernels = [k if len(k) == 8 else k + (0,) for k in kernels]
    for (lab, grid, block, lds, lines, nv, ns, na) in kernels:
        out.append(f"; @launch kernel={lab} grid=({grid},1,1) block=({block},1,1) lds={lds}")
    out.append('.amdgcn_target "amdgcn-amd-amdhsa--gfx950"')
    out.append(".text")
    for (lab, grid, block, lds, lines, nv, ns, na) in kernels:
        out += [f".globl {lab}", ".p2align 8", f".type {lab},@function", f"{lab}:"]
        out += fix_hazards(lines)
    out.append('.section .rodata,"a"')
    for (lab, grid, block, lds, lines, nv, ns, na) in kernels:
        acc = (nv + 3) // 4 * 4
        out += [".p2align 6", f".amdhsa_kernel {lab}", f"  .amdhsa_next_free_vgpr {acc + na if na else nv}", f"  .amdhsa_next_free_sgpr {100 if STAMPS else ns}",
                f"  .amdhsa_accum_offset {acc}", "  .amdhsa_group_segment_fixed_size 0", "  .amdhsa_kernarg_size 136",
                "  .amdhsa_user_sgpr_count 2", "  .amdhsa_user_sgpr_kernarg_segment_ptr 1", "  .amdhsa_system_sgpr_workgroup_id_x 1",
                ".end_amdhsa_kernel"]
    return "\n".join(out) + "\n"

if __name__ == "__main__":
    import gen2
    gen2.gen_all(kernels)
    import gen3
    gen3.gen_all(kernels)
    dst = sys.argv[1] if len(sys.argv) > 1 else f"cdna_kernels/{NAME}.s"
    open(dst, "w").write(emit(kernels))
    print("wrote", dst)
```

```python
import sys, struct
from asmlib import Asm, stamp, flush_stamps, kstart
import layout as LY
def f2u(f): return struct.unpack("<I", struct.pack("<f", f))[0]
def hx(f): return "0x%08x" % f2u(f)
def add64(a, d, s, imm):
    a(f"s_add_u32 s{d}, s{s}, {imm}\ns_addc_u32 s{d+1}, s{s+1}, 0")
def rnd_bf16(a, d, s):
    a(f"v_cvt_pk_bf16_f32 v{d}, v{s}, v{s}\nv_lshlrev_b32 v{d}, 16, v{d}")
L2E = 1.4426950408889634
L2E_HI = struct.unpack("<f", struct.pack("<f", L2E))[0]
L2E_LO = L2E - L2E_HI
DPP6 = ("row_shr:1 row_mask:0xf bank_mask:0xf", "row_shr:2 row_mask:0xf bank_mask:0xf", "row_shr:4 row_mask:0xf bank_mask:0xf",
        "row_shr:8 row_mask:0xf bank_mask:0xf", "row_bcast:15 row_mask:0xa bank_mask:0xf", "row_bcast:31 row_mask:0xc bank_mask:0xf")

def gen_k2(kernels):
    a = Asm()
    kstart(a)
    USTR = 4288
    PAR = 0
    PW = 4096
    STL = PW + 2048
    CT = STL + 64
    KD = CT + 8 * 3072 + 64
    KDS = 8448
    KHL = KD + 2 * KDS
    UC = KHL + 20480
    LDS = UC + 16 * USTR
    RED = UC
    XL = CT
    a(f"""
    s_cmp_ge_u32 s2, 256
    s_cbranch_scc1 K2_END
    s_load_dwordx16 s[16:31], s[0:1], 0
    s_load_dwordx2 s[34:35], s[0:1], 64
    s_load_dwordx4 s[48:51], s[0:1], 120
    s_load_dwordx8 s[52:59], s[0:1], 80
    v_lshrrev_b32 v1, 6, v0
    v_readfirstlane_b32 s8, v1
    v_and_b32 v2, 63, v0
    s_lshl_b32 s5, s2, 13
    v_lshlrev_b32 v6, 4, v0
    v_add_u32 v6, s5, v6
    s_lshr_b32 s9, s8, 2
    s_and_b32 s10, s8, 3
    s_and_b32 s3, s2, 7
    s_lshl_b32 s3, s3, 5
    s_lshr_b32 s4, s2, 3
    s_add_u32 s61, s3, s4
    s_lshl_b32 s3, s61, 2
    v_lshlrev_b32 v13, 12, v0
    v_add_u32 v13, s3, v13
    v_and_b32 v3, 31, v2
    s_lshl_b32 s4, s8, 5
    v_add_u32 v3, s4, v3
    s_lshl_b32 s4, s61, 8
    v_add_u32 v4, s4, v3
    v_lshlrev_b32 v4, 1, v4
    s_lshl_b32 s4, s61, 1
    s_add_u32 s4, s4, s9
    s_lshl_b32 s5, s4, 1
    v_mov_b32 v5, s5
    s_waitcnt lgkmcnt(0)
    s_mov_b32 s32, s50
    s_mov_b32 s33, s51
    s_load_dword s15, s[34:35], s3
    """)
    stamp(a)
    a("global_load_dwordx4 v[64:67], v6, s[16:17]")
    for i in range(6):
        a(f"global_load_ushort v{20+i}, v4, s[{18+2*i}:{19+2*i}]")
    a("global_load_ushort v26, v5, s[30:31]")
    def gathers():
        for j in range(4): a(f"global_load_dword v{144+j}, v13, s[16:17] offset:{1024*j}")
    def side_jobs(tag):
        a(f"""
        s_getpc_b64 s[46:47]
        K2_PCBASE{tag}:
        s_lshr_b32 s5, s2, 3
        s_lshl_b32 s5, s5, 13
        v_lshlrev_b32 v86, 4, v0
        v_add_u32 v86, s5, v86
        v_cmp_gt_u32 vcc, K6_END-K2_PCBASE{tag}-16, v86
        s_and_saveexec_b64 s[42:43], vcc
        s_cbranch_execz K2_NOCODE{tag}
        global_load_dwordx4 v[200:203], v86, s[46:47]
        K2_NOCODE{tag}:
        s_mov_b64 exec, -1
        s_cmp_ge_u32 s2, 144
        s_cbranch_scc1 K2_PFJ{tag}
        s_mul_hi_u32 s12, s2, {(2**32 + 17)//18}
        s_mul_i32 s5, s12, 18
        s_sub_u32 s13, s2, s5
        v_lshrrev_b32 v86, 4, v0
        v_and_b32 v85, 15, v0
        s_cmp_lt_u32 s13, 4
        s_mov_b32 s5, 1024
        s_cselect_b32 s5, s5, 3584
        s_cselect_b32 s6, 0, 4
        s_cselect_b32 s46, s52, s56
        s_cselect_b32 s47, s53, s57
        s_sub_u32 s6, s13, s6
        s_lshl_b32 s7, s12, 6
        v_add_u32 v86, s7, v86
        v_mul_lo_u32 v86, v86, s5
        v_lshl_add_u32 v86, v85, 4, v86
        s_lshl_b32 s7, s6, 8
        v_add_u32 v86, s7, v86
        s_lshl_b32 s5, s5, 5
        v_add_u32 v85, s5, v86
        global_load_dwordx4 v[176:179], v86, s[46:47]
        global_load_dwordx4 v[180:183], v85, s[46:47]
        s_branch K2_SIDE_DONE{tag}
        K2_PFJ{tag}:
        s_sub_u32 s5, s2, 144
        s_mov_b32 s40, s54
        s_mov_b32 s41, s55
        s_mov_b32 s42, {512*1024}
        s_mov_b32 s43, 0x00020000
        s_lshl_b32 s6, s5, 13
        v_lshlrev_b32 v86, 4, v0
        v_add_u32 v86, s6, v86
        buffer_load_dwordx4 v[184:187], v86, s[40:43], 0 offen
        s_mov_b32 s40, s58
        s_mov_b32 s41, s59
        s_mov_b32 s42, {1792*1024}
        v_add_u32 v86, s6, v86
        v_add_u32 v85, 0x2000, v86
        buffer_load_dwordx4 v[188:191], v86, s[40:43], 0 offen
        buffer_load_dwordx4 v[192:195], v85, s[40:43], 0 offen
        K2_SIDE_DONE{tag}:
        """)
    add64(a, 36, 32, LY.ST1); add64(a, 44, 32, LY.HT)
    a(f"""
    v_and_b32 v9, 15, v2
    v_lshrrev_b32 v10, 4, v2
    v_and_b32 v5, 255, v0
    s_mul_i32 s5, s9, {8*USTR}
    s_add_u32 s5, s5, {UC}
    v_lshlrev_b32 v7, 4, v5
    v_add_u32 v7, s5, v7
    s_mul_i32 s3, s4, {LY.TROW}
    s_lshl_b32 s6, s10, 10
    s_add_u32 s3, s3, s6
    v_lshlrev_b32 v11, 5, v9
    v_lshl_add_u32 v11, v10, 3, v11
    v_add_u32 v12, s3, v11
    v_add_u32 v15, s5, v11
    v_add_u32 v15, s6, v15
    s_mov_b32 s23, 0xffff0000
    s_mov_b32 s11, {hx(1.0/512)}
    s_mov_b32 s14, {hx(1e-5)}
    v_lshlrev_b32 v40, 1, v9
    v_cvt_f32_u32 v42, v40
    v_lshlrev_b32 v40, 5, v9
    v_cvt_f32_u32 v46, v40
    v_lshlrev_b32 v40, 2, v9
    v_add_u32 v40, 0x200, v40
    v_and_b32 v45, 3, v9
    v_lshlrev_b32 v45, 3, v45
    v_bfe_u32 v41, v9, 2, 1
    v_lshlrev_b32 v41, 9, v41
    v_add3_u32 v45, v45, v41, 0
    v_add_u32 v45, 0x400, v45
    v_cmp_gt_u32 vcc, 8, v9
    v_cndmask_b32 v40, v45, v40, vcc
    v_cvt_f32_u32 v44, v40
    v_lshlrev_b32 v39, 3, v3
    v_lshlrev_b32 v3, 4, v3
    s_lshl_b32 s5, s8, 9
    v_lshlrev_b32 v8, 6, v10
    v_add_u32 v8, s5, v8
    v_lshrrev_b32 v38, 1, v8
    s_mul_i32 s5, s8, 3072
    s_add_u32 s5, s5, {CT}
    v_lshlrev_b32 v47, 4, v2
    v_add_u32 v47, s5, v47
    """)
    for r in range(48, 60): a(f"v_mov_b32 v{r}, 0")
    a("s_waitcnt vmcnt(7)")
    for q in range(4):
        a(f"v_lshlrev_b32 v{72+2*q}, 16, v{64+q}\nv_and_b32 v{73+2*q}, s23, v{64+q}")
    a("v_readfirstlane_b32 s5, v72\nv_mov_b32 v80, 0\nv_mov_b32 v81, 0")
    for e in range(8):
        a(f"v_subrev_f32 v82, s5, v{72+e}\nv_add_f32 v80, v80, v82\nv_fmac_f32 v81, v82, v82")
    for m in DPP6:
        a(f"v_add_f32_dpp v80, v80, v80 {m}\nv_add_f32_dpp v81, v81, v81 {m}")
    a(f"""
    v_mul_f32 v80, s11, v80
    v_mul_f32 v81, s11, v81
    v_fma_f32 v81, -v80, v80, v81
    v_max_f32 v81, 0, v81
    v_add_f32 v80, s5, v80
    """)
    rnd_bf16(a, 81, 81)
    a("v_add_f32 v81, s14, v81")
    rnd_bf16(a, 81, 81)
    a("v_sqrt_f32 v81, v81")
    rnd_bf16(a, 81, 81)
    rnd_bf16(a, 80, 80)
    a(f"""
    s_lshl_b32 s5, s8, 3
    v_mov_b32 v82, s5
    s_mov_b32 exec_lo, 0
    s_mov_b32 exec_hi, 0x80000000
    ds_write_b64 v82, v[80:81] offset:{STL}
    s_mov_b64 exec, -1
    s_waitcnt vmcnt(0) lgkmcnt(0)
    s_barrier
    s_cmp_eq_u32 s8, 0
    s_cbranch_scc1 K2_W0
    """)
    gathers(); side_jobs("A")
    a(f"""
    s_branch K2_W0D
    K2_W0:
    v_lshlrev_b32 v82, 3, v2
    s_lshl_b32 s3, s2, 6
    v_add_u32 v83, s3, v82
    s_mov_b64 exec, 0xff
    ds_read_b64 v[80:81], v82 offset:{STL}
    s_waitcnt lgkmcnt(0)
    global_store_dwordx2 v83, v[80:81], s[36:37] sc1
    s_mov_b64 exec, -1
    K2_W0D:
    s_mov_b32 s4, {hx(L2E_HI)}
    s_mov_b32 s5, {hx(L2E_LO)}
    s_mov_b32 s6, {hx(0.6931471805599453)}
    s_mov_b32 s7, {hx(2048.0)}
    """)
    stamp(a)
    for i in range(7):
        a(f"v_lshlrev_b32 v{20+i}, 16, v{20+i}")
    a(f"""
    v_mul_f32 v27, s4, v26
    v_fma_f32 v28, v26, s4, -v27
    v_fmac_f32 v28, s5, v26
    v_exp_f32 v27, v27
    v_mul_f32 v28, s6, v28
    v_fma_f32 v27, v27, v28, v27
    """)
    rnd_bf16(a, 27, 27)
    a(f"""
    v_mul_f32 v20, v27, v20
    v_mul_f32 v21, v27, v21
    v_mul_f32 v22, v27, v22
    v_mul_f32 v23, v27, v23
    v_mul_f32 v32, s4, v20
    v_mul_f32 v33, 0.15915494, v21
    v_mul_f32 v34, v24, v22
    v_mul_f32 v35, v24, v23
    v_fma_f32 v34, -v25, v23, v34
    v_fma_f32 v35, v25, v22, v35
    ds_write_b128 v3, v[32:35] offset:{PAR}
    v_fract_f32 v29, v33
    v_exp_f32 v28, v32
    v_sin_f32 v31, v29
    v_cos_f32 v30, v29
    v_mul_f32 v36, s7, v32
    v_mul_f32 v37, s7, v33
    v_mul_f32 v30, v28, v30
    v_mul_f32 v31, v28, v31
    ds_write_b64 v39, v[30:31] offset:{PW}
    v_fract_f32 v37, v37
    v_exp_f32 v36, v36
    v_sin_f32 v28, v37
    v_cos_f32 v29, v37
    v_mul_f32 v29, v34, v29
    v_fma_f32 v29, -v35, v28, v29
    v_mul_f32 v29, v36, v29
    """)
    for m in DPP6[:5]: a(f"v_add_f32_dpp v29, v29, v29 {m}")
    a(f"""
    s_lshl_b32 s11, s8, 2
    v_mov_b32 v36, s11
    s_mov_b32 exec_lo, 0x80000000
    s_mov_b32 exec_hi, 0
    ds_write_b32 v36, v29 offset:{CT + 8*3072}
    s_mov_b64 exec, -1
    s_waitcnt lgkmcnt(0)
    """)
    HB, HA = 96, 104
    def cexp4(F, E):
        T = 124
        for j in range(4): a(f"v_pk_mul_f32 v[{T+2*j}:{T+2*j+1}], v[{80+4*j}:{81+4*j}], v[{F}:{F+1}] op_sel_hi:[1,0]")
        for j in range(4): a(f"v_fract_f32 v{T+2*j+1}, v{T+2*j+1}")
        for j in range(4): a(f"v_exp_f32 v{T+2*j}, v{T+2*j}")
        for j in range(4): a(f"v_sin_f32 v{E+2*j+1}, v{T+2*j+1}")
        for j in range(4): a(f"v_cos_f32 v{E+2*j}, v{T+2*j+1}")
        for j in range(4): a(f"v_pk_mul_f32 v[{E+2*j}:{E+2*j+1}], v[{E+2*j}:{E+2*j+1}], v[{T+2*j}:{T+2*j+1}] op_sel_hi:[1,0]")
    def split4(E, H):
        T = 124
        for j in range(4): a(f"v_cvt_pk_bf16_f32 v{H+j}, v{E+2*j}, v{E+2*j+1}")
        for j in range(4): a(f"v_lshlrev_b32 v{T+2*j}, 16, v{H+j}\nv_and_b32 v{T+2*j+1}, s23, v{H+j}")
        for j in range(4): a(f"v_pk_add_f32 v[{T+2*j}:{T+2*j+1}], v[{E+2*j}:{E+2*j+1}], v[{T+2*j}:{T+2*j+1}] neg_lo:[0,1] neg_hi:[0,1]")
        for j in range(4): a(f"v_cvt_pk_bf16_f32 v{H+4+j}, v{T+2*j}, v{T+2*j+1}")
    def mf3(tau):
        acc = 48 + 4 * tau
        a(f"v_mfma_f32_16x16x32_bf16 v[{acc}:{acc+3}], v[{HA}:{HA+3}], v[{HB}:{HB+3}], v[{acc}:{acc+3}]")
        a(f"v_mfma_f32_16x16x32_bf16 v[{acc}:{acc+3}], v[{HA}:{HA+3}], v[{HB+4}:{HB+7}], v[{acc}:{acc+3}]")
        a(f"v_mfma_f32_16x16x32_bf16 v[{acc}:{acc+3}], v[{HA+4}:{HA+7}], v[{HB}:{HB+3}], v[{acc}:{acc+3}]")
    E0, E1 = 132, 160
    for sg in range(2):
        for j in range(4):
            a(f"ds_read_b128 v[{80+4*j}:{83+4*j}], v8 offset:{PAR + 256*sg + 16*j}")
        a(f"ds_read_b128 v[116:119], v38 offset:{PW + 128*sg}\nds_read_b128 v[120:123], v38 offset:{PW + 128*sg + 16}")
        a("s_waitcnt lgkmcnt(0)")
        cexp4(46, E0)
        for j in range(4):
            a(f"v_pk_mul_f32 v[{E1+2*j}:{E1+2*j+1}], v[{E0+2*j}:{E0+2*j+1}], v[{82+4*j}:{83+4*j}] op_sel_hi:[1,0] neg_hi:[0,1]")
        for j in range(4):
            a(f"v_pk_fma_f32 v[{E1+2*j}:{E1+2*j+1}], v[{E0+2*j}:{E0+2*j+1}], v[{82+4*j}:{83+4*j}], v[{E1+2*j}:{E1+2*j+1}] op_sel:[1,1,0] op_sel_hi:[0,1,1] neg_lo:[0,1,0] neg_hi:[0,1,0]")
        split4(E1, HB)
        cexp4(42, E0)
        split4(E0, HA); mf3(0)
        for j in range(4):
            a(f"v_pk_mul_f32 v[{E1+2*j}:{E1+2*j+1}], v[{E0+2*j}:{E0+2*j+1}], v[{116+2*j}:{117+2*j}] op_sel_hi:[1,0]")
        for j in range(4):
            a(f"v_pk_fma_f32 v[{E1+2*j}:{E1+2*j+1}], v[{E0+2*j}:{E0+2*j+1}], v[{116+2*j}:{117+2*j}], v[{E1+2*j}:{E1+2*j+1}] op_sel:[1,1,0] op_sel_hi:[0,1,1] neg_lo:[0,1,0]")
        split4(E1, HA); mf3(1)
        cexp4(44, E0)
        split4(E0, HA); mf3(2)
        if sg == 0:
            a(f"""
            s_cmp_lg_u32 s8, 0
            s_cbranch_scc1 K2_NOSIG
            s_waitcnt vmcnt(0)
            s_and_b32 s3, s2, 3
            s_lshl_b32 s3, s3, 6
            v_mov_b32 v36, s3
            v_mov_b32 v37, 1
            s_mov_b64 exec, 1
            global_atomic_add v36, v37, s[48:49] sc1
            s_mov_b64 exec, -1
            """)
            gathers(); side_jobs("B")
            a("K2_NOSIG:")
    stamp(a)
    for tau in range(3):
        a(f"ds_write_b128 v47, v[{48+4*tau}:{51+4*tau}] offset:{1024*tau}")
    a(f"""
    s_mul_i32 s11, s9, {4*3072}
    s_add_u32 s11, s11, {CT}
    v_lshlrev_b32 v24, 2, v5
    v_add_u32 v24, s11, v24
    s_mul_i32 s12, s9, {KDS}
    s_add_u32 s12, s12, {KD}
    v_bfe_u32 v25, v5, 2, 4
    v_lshrrev_b32 v26, 6, v5
    v_and_b32 v27, 3, v5
    v_lshlrev_b32 v28, 7, v25
    v_add_u32 v28, s12, v28
    v_lshl_add_u32 v29, v26, 5, v28
    v_lshl_add_u32 v29, v27, 3, v29
    v_lshlrev_b32 v30, 6, v26
    v_lshl_add_u32 v30, v27, 4, v30
    v_add_u32 v30, 0x800, v30
    v_and_b32 v31, 1, v26
    v_lshlrev_b32 v31, 11, v31
    v_lshl_add_u32 v31, v27, 5, v31
    v_add_u32 v31, 0x1000, v31
    v_cmp_gt_u32 vcc, 2, v26
    v_cndmask_b32 v30, v31, v30, vcc
    v_add_u32 v30, v30, v28
    s_lshl_b32 s13, s9, 4
    v_mov_b32 v31, s13
    s_cmp_lg_u32 s8, 0
    s_cbranch_scc1 K2_NOPOLL
    v_and_b32 v36, 3, v2
    v_lshlrev_b32 v36, 6, v36
    s_mov_b32 s3, 0
    K2_POLL:
    global_load_dword v37, v36, s[48:49] sc1
    s_waitcnt vmcnt(0)
    v_cmp_gt_u32 vcc, 64, v37
    s_add_u32 s3, s3, 1
    s_cmp_eq_u64 vcc, 0
    s_cbranch_scc1 K2_NOPOLL
    s_sleep 2
    s_cmp_lt_u32 s3, 0x8000
    s_cbranch_scc1 K2_POLL
    K2_NOPOLL:
    s_waitcnt lgkmcnt(0)
    s_barrier
    v_lshlrev_b32 v36, 5, v0
    global_load_dwordx4 v[148:151], v36, s[36:37] sc1
    global_load_dwordx4 v[152:155], v36, s[36:37] offset:16 sc1
    """)
    for tau in range(3):
        for p in range(4):
            a(f"ds_read_b32 v{48+4*tau+p}, v24 offset:{3072*p + 1024*tau}")
    a(f"ds_read_b128 v[60:63], v31 offset:{CT + 8*3072}")
    a("s_waitcnt lgkmcnt(0)")
    for tau in range(4):
        b = 48 + 4 * tau
        a(f"v_add_f32 v{b}, v{b}, v{b+1}\nv_add_f32 v{b+2}, v{b+2}, v{b+3}\nv_add_f32 v{b}, v{b}, v{b+2}")
    a(f"""
    ds_write2_b32 v29, v48, v52 offset0:0 offset1:1
    ds_write_b32 v30, v56
    v_mov_b32 v31, s12
    ds_write_b32 v31, v60 offset:{4*2048}
    s_waitcnt lgkmcnt(0)
    s_barrier
    """)
    stamp(a)
    for it in range(2):
        if it == 1:
            a("v_cmp_gt_u32 vcc, 128, v0\ns_and_saveexec_b64 s[42:43], vcc\ns_cbranch_execz K2_EXP_DONE")
        a(f"""
        v_add_u32 v1, {512*it}, v0
        v_cmp_le_u32 vcc, 320, v1
        v_subrev_u32 v24, 320, v1
        v_cndmask_b32 v1, v1, v24, vcc
        v_mov_b32 v24, {KD}
        v_mov_b32 v25, {KD + KDS}
        v_cndmask_b32 v24, v24, v25, vcc
        v_mov_b32 v25, {KHL}
        v_mov_b32 v26, {KHL + 10240}
        v_cndmask_b32 v25, v25, v26, vcc
        v_lshl_add_u32 v25, v1, 4, v25
        v_lshlrev_b32 v1, 3, v1
        v_sub_u32 v1, {LY.KOFF}, v1
        """)
        for e in range(8):
            a(f"v_subrev_u32 v{50+e}, {e}, v1\nv_min_u32 v{60+e}, 0x7ff, v{50+e}\nv_cvt_f32_u32 v{60+e}, v{60+e}")
        for q in range(4):
            a(f"v_cvt_pk_bf16_f32 v{70+q}, v{60+2*q}, v{61+2*q}")
        for q in range(4):
            a(f"v_lshlrev_b32 v{60+2*q}, 16, v{70+q}\nv_and_b32 v{61+2*q}, s23, v{70+q}")
        for e in range(8):
            a(f"v_cvt_u32_f32 v{60+e}, v{60+e}\nv_lshl_add_u32 v{60+e}, v{60+e}, 2, v24\nds_read_b32 v{70+e}, v{60+e}")
        a("s_waitcnt lgkmcnt(0)")
        for e in range(8):
            a(f"v_cmp_gt_u32 vcc, 0x800, v{50+e}\nv_cndmask_b32 v{70+e}, 0, v{70+e}, vcc")
        for q in range(4):
            a(f"""
            v_cvt_pk_bf16_f32 v{80+q}, v{70+2*q}, v{71+2*q}
            v_lshlrev_b32 v60, 16, v{80+q}
            v_and_b32 v61, s23, v{80+q}
            v_pk_add_f32 v[60:61], v[{70+2*q}:{71+2*q}], v[60:61] neg_lo:[0,1] neg_hi:[0,1]
            v_cvt_pk_bf16_f32 v{84+q}, v60, v61
            """)
        a("ds_write_b128 v25, v[80:83]\nds_write_b128 v25, v[84:87] offset:5120")
        if it == 1: a("K2_EXP_DONE:\ns_mov_b64 exec, s[42:43]")
    a("s_waitcnt vmcnt(0)")
    for j in range(4):
        mb, dn = 148 + 2 * j, 149 + 2 * j
        a(f"""
        v_rcp_f32 v64, v{dn}
        v_lshlrev_b32 v{66+j}, 16, v{144+j}
        v_and_b32 v{70+j}, s23, v{144+j}
        """)
        for x in (66 + j, 70 + j):
            a(f"v_sub_f32 v{x}, v{x}, v{mb}")
            rnd_bf16(a, x, x)
            a(f"v_mul_f32 v65, v{x}, v64\nv_fma_f32 v74, -v65, v{dn}, v{x}\nv_fma_f32 v{x}, v74, v64, v65")
    a(f"""
    v_cvt_pk_bf16_f32 v76, v66, v67
    v_cvt_pk_bf16_f32 v77, v68, v69
    v_cvt_pk_bf16_f32 v78, v70, v71
    v_cvt_pk_bf16_f32 v79, v72, v73
    s_mov_b32 s13, 0x05040100
    s_mov_b32 s14, 0x07060302
    v_perm_b32 v80, v145, v144, s13
    v_perm_b32 v81, v147, v146, s13
    v_perm_b32 v82, v145, v144, s14
    v_perm_b32 v83, v147, v146, s14
    v_lshlrev_b32 v1, 3, v0
    v_add_u32 v36, {UC + 64}, v1
    ds_write_b64 v36, v[76:77]
    ds_write_b64 v36, v[78:79] offset:{8*USTR}
    v_add_u32 v36, {XL}, v1
    ds_write_b64 v36, v[80:81]
    ds_write_b64 v36, v[82:83] offset:4096
    v_mov_b32 v88, 0
    v_mov_b32 v89, 0
    v_mov_b32 v90, 0
    v_mov_b32 v91, 0
    v_and_b32 v36, 15, v0
    v_lshlrev_b32 v36, 4, v36
    v_add_u32 v37, 0x1000, v36
    v_cmp_gt_u32 vcc, 64, v36
    v_cndmask_b32 v36, v37, v36, vcc
    v_bfe_u32 v37, v0, 4, 1
    v_mul_u32_u24 v37, {8*USTR}, v37
    v_add3_u32 v36, v36, v37, 0
    v_add_u32 v36, {UC}, v36
    v_and_b32 v37, 15, v0
    v_cmp_gt_u32 vcc, 12, v37
    v_cmp_gt_u32 s[42:43], 32, v0
    s_and_b64 vcc, vcc, s[42:43]
    s_and_saveexec_b64 s[42:43], vcc
    ds_write_b128 v36, v[88:91]
    s_mov_b64 exec, s[42:43]
    s_cmp_lg_u32 s2, 0
    s_cbranch_scc1 K2_NOZ
    v_lshlrev_b32 v84, 4, v0
    v_add_u32 v85, {LY.HM - 2048}, v84
    v_add_u32 v84, {LY.HM + 2048*1024 - 2048}, v84
    v_cmp_gt_u32 vcc, 128, v0
    v_cndmask_b32 v84, v84, v85, vcc
    v_cmp_gt_u32 vcc, 256, v0
    s_and_saveexec_b64 s[42:43], vcc
    global_store_dwordx4 v84, v[88:91], s[32:33]
    s_mov_b64 exec, s[42:43]
    K2_NOZ:
    s_waitcnt lgkmcnt(0)
    s_barrier
    ds_read_b128 v[144:147], v7
    ds_read_b128 v[148:151], v7 offset:16
    ds_read_b128 v[152:155], v7 offset:4096
    ds_read_b128 v[156:159], v7 offset:4112
    s_lshl_b32 s3, s9, 12
    s_lshl_b32 s6, s10, 10
    s_add_u32 s3, s3, s6
    v_add_u32 v36, s3, v11
    ds_read_b64 v[16:17], v36 offset:{XL}
    ds_read_b64 v[18:19], v36 offset:{XL+512}
    ds_read_b64 v[20:21], v15 offset:64
    ds_read_b64 v[22:23], v15 offset:{512+64}
    s_waitcnt lgkmcnt(0)
    """)
    for it in range(2):
        b = 144 + 8 * it
        if it == 1:
            a("v_cmp_gt_u32 vcc, 8, v5\ns_and_saveexec_b64 s[42:43], vcc\ns_cbranch_execz K2_CP_DONE")
        off0 = 4096 * it
        for cc in range(1, 8):
            e = cc >> 1
            if cc & 1 == 0:
                if e % 2 == 0:
                    a(f"ds_write_b128 v7, v[{b+e}:{b+e+3}] offset:{cc*USTR + off0}")
                else:
                    for q in range(4): a(f"v_mov_b32 v{24+q}, v{b+e+q}")
                    a(f"ds_write_b128 v7, v[24:27] offset:{cc*USTR + off0}")
            else:
                t = 28 if (cc & 2) else 88
                for q in range(4): a(f"v_alignbit_b32 v{t+q}, v{b+e+q+1}, v{b+e+q}, 16")
                a(f"ds_write_b128 v7, v[{t}:{t+3}] offset:{cc*USTR + off0}")
        if it == 1: a("K2_CP_DONE:\ns_mov_b64 exec, s[42:43]")
    a(f"""
    v_and_b32 v13, 7, v9
    v_mul_u32_u24 v13, {USTR}, v13
    v_and_b32 v14, 8, v9
    v_lshl_add_u32 v14, v10, 3, v14
    v_lshl_add_u32 v13, v14, 1, v13
    s_mul_i32 s4, s9, {8*USTR}
    s_add_u32 s4, s4, {UC}
    v_add_u32 v13, s4, v13
    v_lshlrev_b32 v14, 5, v9
    v_sub_u32 v14, 480, v14
    v_lshl_add_u32 v14, v10, 4, v14
    s_mul_i32 s5, s9, 10240
    s_add_u32 s5, s5, {KHL}
    v_add_u32 v14, s5, v14
    """)
    for r in range(32): a(f"v_mov_b32 v{32+r}, 0")
    a("s_waitcnt lgkmcnt(0)\ns_barrier")
    stamp(a)
    def SQ(d0):
        if d0 == 0: return list(range(0, 8)), list(range(0, 8))
        if d0 == 32: return list(range(0, 9)), list(range(-1, 8))
        return list(range(1, 9)), list(range(-1, 7))
    base = 64
    U = {s: base + 4 * s for s in range(9)}
    KHr = {q: base + 36 + 4 * (q + 1) for q in range(-1, 8)}
    KLr = {q: base + 72 + 4 * (q + 1) for q in range(-1, 8)}
    def body(d0):
        S, Q = SQ(d0)
        L = []
        for q in Q:
            o = 2 * (LY.KOFF - 240 - 256 * q - d0)
            L.append(f"ds_read_b128 v[{KHr[q]}:{KHr[q]+3}], v14 offset:{o}")
            L.append(f"ds_read_b128 v[{KLr[q]}:{KLr[q]+3}], v14 offset:{o + 5120}")
        for s in S:
            L.append(f"ds_read_b128 v[{U[s]}:{U[s]+3}], v13 offset:{512*s - 2*d0 + 64}")
        for ln in L: a(ln)
        for k, s in enumerate(S):
            a(f"s_waitcnt lgkmcnt({len(S) - 1 - k})")
            for q in Q:
                t = s + q
                if 0 <= t <= 7:
                    a(f"v_mfma_f32_16x16x32_bf16 v[{32+4*t}:{35+4*t}], v[{U[s]}:{U[s]+3}], v[{KHr[q]}:{KHr[q]+3}], v[{32+4*t}:{35+4*t}]")
                    a(f"v_mfma_f32_16x16x32_bf16 v[{32+4*t}:{35+4*t}], v[{U[s]}:{U[s]+3}], v[{KLr[q]}:{KLr[q]+3}], v[{32+4*t}:{35+4*t}]")
    a("s_cmp_lg_u32 s10, 0\ns_cbranch_scc1 K2_GEN")
    body(0); body(32)
    a("s_branch K2_RED")
    a(f"""
    K2_GEN:
    s_sub_u32 s4, s10, 1
    s_lshl_b32 s4, s4, 7
    v_subrev_u32 v13, s4, v13
    v_subrev_u32 v14, s4, v14
    """)
    body(64); body(96)
    a("K2_RED:")
    stamp(a)
    for q in range(4):
        a(f"""
        v_lshlrev_b32 v{184+2*q}, 16, v{176+q}
        v_and_b32 v{185+2*q}, s23, v{176+q}
        v_lshlrev_b32 v192, 16, v{180+q}
        v_and_b32 v193, s23, v{180+q}
        v_pk_add_f32 v[{184+2*q}:{185+2*q}], v[{184+2*q}:{185+2*q}], v[192:193]
        """)
    a(f"""
    v_lshlrev_b32 v1, 5, v0
    ds_write_b128 v1, v[184:187]
    ds_write_b128 v1, v[188:191] offset:16
    s_lshl_b32 s4, s8, 13
    s_add_u32 s4, s4, {RED}
    v_lshlrev_b32 v3, 4, v2
    v_add_u32 v4, s4, v3
    s_lshl_b32 s5, s9, 15
    s_lshl_b32 s6, s10, 11
    s_add_u32 s5, s5, s6
    s_add_u32 s5, s5, {RED}
    v_add_u32 v5, s5, v3
    s_barrier
    """)
    for t in range(8): a(f"ds_write_b128 v4, v[{32+4*t}:{35+4*t}] offset:{1024*t}")
    a("s_waitcnt lgkmcnt(0)\ns_barrier")
    for p in range(4):
        for i in range(2):
            a(f"ds_read_b128 v[{64+8*p+4*i}:{67+8*p+4*i}], v5 offset:{8192*p + 1024*i}")
    a(f"""
    s_lshl_b32 s6, s15, 16
    s_and_b32 s7, s15, 0xffff0000
    s_cmp_eq_u32 s9, 0
    s_cselect_b32 s6, s6, s7
    s_waitcnt lgkmcnt(0)
    """)
    for k in range(8):
        a(f"v_add_f32 v{64+k}, v{64+k}, v{72+k}\nv_add_f32 v{80+k}, v{80+k}, v{88+k}")
    for k in range(8): a(f"v_add_f32 v{64+k}, v{64+k}, v{80+k}")
    for i in range(2):
        for r in range(4):
            y = 64 + 4 * i + r
            rnd_bf16(a, y, y)
            usrc = 20 + 2 * i + (r >> 1); xsrc = 16 + 2 * i + (r >> 1)
            if r & 1:
                a(f"v_and_b32 v{90+2*r}, 0xffff0000, v{usrc}\nv_and_b32 v{91+2*r}, 0xffff0000, v{xsrc}")
            else:
                a(f"v_lshlrev_b32 v{90+2*r}, 16, v{usrc}\nv_lshlrev_b32 v{91+2*r}, 16, v{xsrc}")
            a(f"v_mul_f32 v{90+2*r}, s6, v{90+2*r}")
            rnd_bf16(a, 90 + 2 * r, 90 + 2 * r)
            a(f"v_add_f32 v{y}, v{y}, v{90+2*r}")
            rnd_bf16(a, y, y)
            a(f"v_add_f32 v{y}, v{y}, v{91+2*r}")
        a(f"v_cvt_pk_bf16_f32 v{100+2*i}, v{64+4*i}, v{65+4*i}")
        a(f"v_cvt_pk_bf16_f32 v{101+2*i}, v{66+4*i}, v{67+4*i}")
        a(f"global_store_dwordx2 v12, v[{100+2*i}:{101+2*i}], s[44:45] offset:{512*i}")
    a("""
    s_cmp_ge_u32 s2, 144
    s_cbranch_scc1 K2_FIN
    s_cmp_ge_u32 s8, 2
    s_cbranch_scc1 K2_FIN
    v_lshlrev_b32 v1, 2, v0
    """)
    for j in range(32): a(f"ds_read_b32 v{104+j}, v1 offset:{512*j}")
    a(f"""
    s_mul_hi_u32 s12, s2, {(2**32 + 17)//18}
    s_mul_i32 s5, s12, 18
    s_sub_u32 s13, s2, s5
    s_cmp_lt_u32 s13, 4
    s_mov_b32 s6, {LY.CS1}
    s_mov_b32 s10, 2048
    s_cselect_b32 s5, 0, 4
    s_cselect_b32 s6, s6, {LY.CS3}
    s_cselect_b32 s10, s10, 7168
    s_sub_u32 s13, s13, s5
    s_lshl_b32 s7, s13, 9
    s_add_u32 s6, s6, s7
    s_mul_i32 s7, s12, s10
    s_add_u32 s6, s6, s7
    v_add_u32 v1, s6, v1
    s_waitcnt lgkmcnt(0)
    """)
    for st in (16, 8, 4, 2, 1):
        for j in range(st): a(f"v_add_f32 v{104+j}, v{104+j}, v{104+j+st}")
    a("global_store_dword v1, v104, s[32:33]\nK2_FIN:")
    flush_stamps(a, 2)
    a("K2_END:\ns_endpgm")
    kernels.append(("k2_kernel", 256, 512, LDS, a.lines, 208, 64))

def gen_all(kernels):
    gen_k2(kernels)
```

```python
import sys, struct
from asmlib import Asm, stamp, flush_stamps, kstart
import layout as LY
from gen2 import f2u, hx, add64, rnd_bf16
L2E = 1.4426950408889634
GK0 = -2 * L2E * 0.7978845608028654
GK1 = GK0 * 0.044715

def srd(a, d, base, off, nbytes):
    a(f"""
    s_add_u32 s{d}, s{base}, {off}
    s_addc_u32 s{d+1}, s{base+1}, 0
    s_mov_b32 s{d+2}, {nbytes}
    s_mov_b32 s{d+3}, 0x00020000
    """)

def lane_consts(a):
    a("""
    v_lshrrev_b32 v1, 6, v0
    v_readfirstlane_b32 s8, v1
    v_and_b32 v2, 63, v0
    v_and_b32 v9, 15, v0
    v_bfe_u32 v10, v0, 4, 2
    """)

def dma_voff128(a, vd, ld, vt):
    a(f"""
    v_lshrrev_b32 v{vd}, 3, v2
    v_bfe_u32 v{vt}, v2, 4, 1
    v_lshlrev_b32 v{vt}, 1, v{vt}
    s_and_b32 s3, s8, 1
    s_lshl_b32 s3, s3, 2
    v_or_b32 v{vt}, s3, v{vt}
    v_and_b32 v1, 7, v2
    v_xor_b32 v{vt}, v1, v{vt}
    v_mul_u32_u24 v{vd}, {ld}, v{vd}
    v_lshl_add_u32 v{vd}, v{vt}, 4, v{vd}
    """)

NW = 8
class Dma:
    def __init__(self, a, voff, srdr, rows, ld, sso, soff0):
        self.a, self.voff, self.srdr, self.rows, self.ld, self.sso = a, voff, srdr, rows, ld, sso
        a(f"s_mul_i32 s{sso}, s8, {rows*ld}\ns_lshl_b32 s{sso+1}, s8, 10")
        if soff0 is not None: a(f"s_add_u32 s{sso}, s{sso}, s{soff0}")
    def issue(self, n, ldsbase, voffs=None):
        a = self.a
        for j in range(n):
            vo = self.voff if voffs is None else voffs[j % len(voffs)]
            a(f"s_add_u32 m0, s{self.sso+1}, {ldsbase + 1024*NW*j}")
            a(f"buffer_load_dwordx4 v{vo}, s[{self.srdr}:{self.srdr+3}], s{self.sso} offen lds")
            a(f"s_add_u32 s{self.sso}, s{self.sso}, {NW*self.rows*self.ld}")

def tr_base128(a, vd, chunk2_expr_imm, ldsbase, vt1, vt2, wave_chunk=False):
    a(f"""
    v_bfe_u32 v{vt1}, v9, 3, 1
    v_lshlrev_b32 v{vt1}, 1, v{vt1}
    v_and_b32 v{vt2}, 1, v10
    v_lshl_or_b32 v{vt1}, v{vt2}, 2, v{vt1}
    v_bfe_u32 v{vt2}, v9, 1, 1
    """)
    if wave_chunk:
        a(f"v_add_u32 v{vt2}, s{wave_chunk}, v{vt2}")
    else:
        a(f"v_add_u32 v{vt2}, {chunk2_expr_imm}, v{vt2}")
    a(f"""
    v_xor_b32 v{vt1}, v{vt1}, v{vt2}
    v_lshlrev_b32 v{vt1}, 4, v{vt1}
    v_and_b32 v{vt2}, 1, v9
    v_lshl_add_u32 v{vt1}, v{vt2}, 3, v{vt1}
    v_lshrrev_b32 v{vt2}, 2, v9
    v_lshl_add_u32 v{vt2}, v10, 3, v{vt2}
    v_lshl_add_u32 v{vd}, v{vt2}, 7, v{vt1}
    v_add_u32 v{vd}, {ldsbase}, v{vd}
    """)

def xor_reduce(a, r, t):
    a(f"""
    v_mov_b32 v{t}, v{r}
    v_permlane32_swap_b32 v{r}, v{t}
    v_add_f32 v{r}, v{r}, v{t}
    v_mov_b32 v{t}, v{r}
    v_permlane16_swap_b32 v{r}, v{t}
    v_add_f32 v{r}, v{r}, v{t}
    """)

def consts(a):
    a(f"""
    s_mov_b32 s20, 0x3f803f80
    s_mov_b32 s21, {hx(1.0/512)}
    s_mov_b32 s22, {hx(1e-5)}
    s_mov_b32 s23, 0xffff0000
    s_mov_b32 s24, {hx(GK0)}
    s_mov_b32 s25, {hx(GK1)}
    """)

def den_from_var(a, v):
    rnd_bf16(a, v, v)
    a(f"v_add_f32 v{v}, s22, v{v}")
    rnd_bf16(a, v, v)
    a(f"v_sqrt_f32 v{v}, v{v}")
    rnd_bf16(a, v, v)

def gelu4(a, x, t, out):
    a(f"""
    v_cvt_pk_bf16_f32 v{t}, v{x}, v{x+1}
    v_cvt_pk_bf16_f32 v{t+1}, v{x+2}, v{x+3}
    v_lshlrev_b32 v{x}, 16, v{t}
    v_and_b32 v{x+1}, s23, v{t}
    v_lshlrev_b32 v{x+2}, 16, v{t+1}
    v_and_b32 v{x+3}, s23, v{t+1}
    v_pk_mul_f32 v[{t}:{t+1}], v[{x}:{x+1}], v[{x}:{x+1}]
    v_pk_mul_f32 v[{t+2}:{t+3}], v[{x+2}:{x+3}], v[{x+2}:{x+3}]
    v_pk_fma_f32 v[{t}:{t+1}], v[{t}:{t+1}], s[26:27], v[30:31]
    v_pk_fma_f32 v[{t+2}:{t+3}], v[{t+2}:{t+3}], s[26:27], v[30:31]
    v_pk_mul_f32 v[{t}:{t+1}], v[{t}:{t+1}], v[{x}:{x+1}]
    v_pk_mul_f32 v[{t+2}:{t+3}], v[{t+2}:{t+3}], v[{x+2}:{x+3}]
    v_exp_f32 v{t}, v{t}
    v_exp_f32 v{t+1}, v{t+1}
    v_exp_f32 v{t+2}, v{t+2}
    v_exp_f32 v{t+3}, v{t+3}
    v_add_f32 v{t}, 1.0, v{t}
    v_add_f32 v{t+1}, 1.0, v{t+1}
    v_add_f32 v{t+2}, 1.0, v{t+2}
    v_add_f32 v{t+3}, 1.0, v{t+3}
    v_rcp_f32 v{t}, v{t}
    v_rcp_f32 v{t+1}, v{t+1}
    v_rcp_f32 v{t+2}, v{t+2}
    v_rcp_f32 v{t+3}, v{t+3}
    v_pk_mul_f32 v[{x}:{x+1}], v[{x}:{x+1}], v[{t}:{t+1}]
    v_pk_mul_f32 v[{x+2}:{x+3}], v[{x+2}:{x+3}], v[{t+2}:{t+3}]
    v_cvt_pk_bf16_f32 v{out}, v{x}, v{x+1}
    v_cvt_pk_bf16_f32 v{out+1}, v{x+2}, v{x+3}
    """)

def gelu_consts(a):
    a("s_mov_b32 s26, s25\ns_mov_b32 s27, s25\nv_mov_b32 v30, s24\nv_mov_b32 v31, s24")

def ln_correct(a, x, cs, nm, sc):
    a(f"""
    v_pk_fma_f32 v[{x}:{x+1}], v[{cs}:{cs+1}], v[{nm}:{nm+1}], v[{x}:{x+1}]
    v_pk_fma_f32 v[{x+2}:{x+3}], v[{cs+2}:{cs+3}], v[{nm}:{nm+1}], v[{x+2}:{x+3}]
    v_pk_mul_f32 v[{x}:{x+1}], v[{x}:{x+1}], v[{sc}:{sc+1}]
    v_pk_mul_f32 v[{x+2}:{x+3}], v[{x+2}:{x+3}], v[{sc}:{sc+1}]
    """)

def tile_map_32x8(a):
    a("""
    s_and_b32 s4, s2, 7
    s_lshl_b32 s4, s4, 2
    s_lshr_b32 s5, s2, 6
    s_add_u32 s4, s4, s5
    s_bfe_u32 s5, s2, 0x30003
    """)

def sum_partials(a, dst, n, vaddr, sbase, stride, nparts, tmp):
    pass


def pipe_loop(a, steps, pre_stage, depth=1):
    n = len(steps)
    seen = set()
    def issue_reads(i):
        st = steps[i]["stage"]
        if st not in seen:
            seen.add(st); pre_stage(st)
        for r in steps[i]["reads"]: a(r)
    for i in range(min(depth, n)): issue_reads(i)
    for i in range(n):
        if i + depth < n: issue_reads(i + depth)
        outstanding = sum(len(steps[k]["reads"]) for k in range(i + 1, min(i + depth + 1, n)))
        a(f"s_waitcnt lgkmcnt({min(15, outstanding)})")
        for m in steps[i]["mfmas"]: a(m)
        for m in steps[i].get("extra", []): a(m)

def cs_reduce(a, regs):
    for m in ("quad_perm:[1,0,3,2] row_mask:0xf bank_mask:0xf", "quad_perm:[2,3,0,1] row_mask:0xf bank_mask:0xf", "row_half_mirror row_mask:0xf bank_mask:0xf"):
        for r in regs: a(f"v_add_f32_dpp v{r}, v{r}, v{r} {m}")

def wave_split(a):
    a("s_lshr_b32 s9, s8, 1\ns_and_b32 s10, s8, 1")


def voff128(a, vd, ld):
    a(f"""
    v_lshrrev_b32 v{vd}, 3, v2
    v_bfe_u32 v1, v2, 4, 1
    v_lshlrev_b32 v1, 1, v1
    v_and_b32 v{vd+1}, 7, v2
    v_xor_b32 v1, v{vd+1}, v1
    v_mul_u32_u24 v{vd}, {ld}, v{vd}
    v_lshl_add_u32 v{vd+1}, v1, 4, v{vd}
    v_mov_b32 v{vd}, v{vd+1}
    v_xor_b32 v{vd+1}, 64, v{vd+1}
    """)

def loader(a, name, NST, PF, items, kslot, tail=None, init=2):
    def issue(st):
        for (voff, srdr, sg, imm, lds) in items(st):
            a(f"s_add_u32 m0, s15, {lds}")
            if imm: a(f"s_add_u32 s3, s{sg}, {imm}\nbuffer_load_dwordx4 v{voff}, s[{srdr}:{srdr+3}], s3 offen lds")
            else: a(f"buffer_load_dwordx4 v{voff}, s[{srdr}:{srdr+3}], s{sg} offen lds")
    cnt = [len(items(st)) for st in range(NST)]
    a.nst = 0
    stamp(a)
    issued = 0
    def issue_upto(n):
        nonlocal issued
        while issued < min(n, NST):
            issue(issued); issued += 1
    issue_upto(init)
    stamp(a)
    for st in range(NST):
        later = sum(cnt[k] for k in range(st + 1, issued))
        a(f"s_waitcnt vmcnt({later})")
        if st < 4: stamp(a)
        a("s_barrier")
        issue_upto(min(st + PF, issued + 1))
        if tail and st == NST - 1: tail()
    flush_stamps(a, kslot, tid=0)
    a.nst = 0
    a("s_endpgm")

def w4_prefetch(a, half):
    def f():
        a(f"""
        s_load_dwordx2 s[44:45], s[0:1], 104
        s_lshr_b32 s3, s2, 3
        s_lshl_b32 s3, s3, 1
        s_add_u32 s3, s3, {half}
        s_mul_i32 s3, s3, 28672
        s_add_u32 s3, s3, s15
        v_lshlrev_b32 v1, 4, v2
        v_add_u32 v1, s3, v1
        s_waitcnt lgkmcnt(0)
        """)
        for j in range(7):
            a(f"global_load_dwordx4 v[{8+4*j}:{11+4*j}], v1, s[44:45]\nv_add_u32 v1, 0x1000, v1")
    return f

def stage_addrs(a, base):
    a(f"""
    s_lshl_b32 s3, s9, 5
    s_lshl_b32 s12, s11, 4
    s_add_u32 s3, s3, s12
    v_add_u32 v5, s3, v9
    v_mul_u32_u24 v5, 144, v5
    v_lshl_add_u32 v5, v10, 3, v5
    s_lshl_b32 s3, s10, 6
    s_add_u32 s3, s3, {base}
    v_add_u32 v5, s3, v5
    v_lshrrev_b32 v1, 3, v2
    s_lshl_b32 s3, s8, 3
    v_add_u32 v1, s3, v1
    v_and_b32 v7, 7, v2
    v_mul_u32_u24 v6, 144, v1
    v_lshl_add_u32 v6, v7, 4, v6
    v_add_u32 v6, {base}, v6
    s_lshl_b32 s3, s4, 6
    v_add_u32 v1, s3, v1
    v_lshlrev_b32 v1, 10, v1
    v_lshl_add_u32 v7, v7, 4, v1
    s_lshl_b32 s3, s5, 7
    v_add_u32 v7, s3, v7
    """)

def tile_voff(a, vd):
    a(f"v_lshrrev_b32 v{vd}, 3, v2\nv_lshlrev_b32 v{vd}, 10, v{vd}\nv_and_b32 v1, 7, v2\nv_lshl_add_u32 v{vd}, v1, 4, v{vd}")

def split3(a):
    a("s_bfe_u32 s9, s8, 0x10001\ns_and_b32 s10, s8, 1\ns_lshr_b32 s11, s8, 2")

def exchange(a, ACC, XB_, pre_writes=(), post_reads=()):
    a(f"""
    s_barrier
    v_lshlrev_b32 v1, 4, v2
    s_lshl_b32 s3, s8, 12
    v_add_u32 v3, s3, v1
    s_xor_b32 s3, s8, 4
    s_lshl_b32 s3, s3, 12
    v_add_u32 v4, s3, v1
    s_cmp_eq_u32 s11, 0
    s_cselect_b64 vcc, -1, 0
    """)
    for r in range(8):
        a(f"v_cndmask_b32 v{XB_+r}, v{ACC+r}, v{ACC+8+r}, vcc\nv_cndmask_b32 v{ACC+r}, v{ACC+8+r}, v{ACC+r}, vcc")
    a(f"ds_write_b128 v3, v[{XB_}:{XB_+3}]\nds_write_b128 v3, v[{XB_+4}:{XB_+7}] offset:1024")
    for w in pre_writes: a(w)
    a("s_waitcnt lgkmcnt(0)\ns_barrier")
    a(f"ds_read_b128 v[{XB_}:{XB_+3}], v4\nds_read_b128 v[{XB_+4}:{XB_+7}], v4 offset:1024")
    for r in post_reads: a(r)
    a("s_waitcnt lgkmcnt(0)")
    for r in range(8): a(f"v_add_f32 v{ACC+r}, v{ACC+r}, v{XB_+r}")

def gen_k3(kernels):
    a = Asm()
    kstart(a)
    WL, HTL = 0, 65536
    a("""
    s_cmp_ge_u32 s2, 256
    s_cbranch_scc1 K3_END
    s_load_dwordx2 s[16:17], s[0:1], 80
    s_load_dwordx2 s[32:33], s[0:1], 128
    """)
    lane_consts(a); tile_map_32x8(a)
    a("s_cmp_ge_u32 s8, 4\ns_cbranch_scc1 K3_C")
    dma_voff128(a, 3, LY.TROW, 5); dma_voff128(a, 4, 1024, 5)
    a(f"""
    s_lshl_b32 s6, s4, 7
    s_mul_i32 s3, s8, {8*LY.TROW}
    s_add_u32 s6, s6, s3
    s_lshl_b32 s7, s5, 7
    s_lshl_b32 s3, s8, 13
    s_add_u32 s7, s7, s3
    s_lshl_b32 s15, s8, 10
    v_bfe_u32 v6, v2, 4, 1
    v_lshlrev_b32 v6, 11, v6
    v_lshl_add_u32 v6, v9, 4, v6
    s_lshl_b32 s13, s5, 8
    s_lshl_b32 s3, s8, 12
    s_add_u32 s13, s13, s3
    s_add_u32 s13, s13, {LY.CS1}
    s_waitcnt lgkmcnt(0)
    """)
    srd(a, 36, 32, LY.HT, 512 * LY.TROW)
    srd(a, 40, 16, 0, 512 * 1024)
    srd(a, 44, 32, 0, 0x2000000)
    MC = 131072
    def items(ch):
        L = []
        for j in range(4):
            idx = 16 * ch + 4 * j
            L.append((3, 36, 6, idx * 8 * LY.TROW, HTL + 1024 * idx))
            L.append((4, 40, 7, idx * 8 * 1024, WL + 1024 * idx))
        if ch == 1: L.append((6, 44, 13, 0, MC))
        return L
    loader(a, "K3", 4, 4, items, 7)
    a("K3_C:\ns_sub_u32 s8, s8, 4")
    consts(a); split3(a)
    CSR = 104
    stamp(a)
    a("s_lshl_b32 s12, s9, 2\ns_add_u32 s13, s12, 2\ns_lshl_b32 s14, s10, 2\ns_add_u32 s15, s14, 2\ns_lshl_b32 s28, s11, 12")
    tr_base128(a, 11, 0, HTL, 5, 6, wave_chunk=12)
    tr_base128(a, 12, 0, HTL, 5, 6, wave_chunk=13)
    tr_base128(a, 13, 0, WL, 5, 6, wave_chunk=14)
    tr_base128(a, 14, 0, WL, 5, 6, wave_chunk=15)
    a("""
    s_cmp_eq_u32 s11, 0
    s_cselect_b64 vcc, -1, 0
    v_cndmask_b32 v15, v12, v11, vcc
    s_lshl_b32 s3, s5, 1
    s_add_u32 s3, s3, s10
    s_lshl_b32 s29, s3, 12
    v_add_u32 v15, s29, v15
    """)
    for r in range(11, 15): a(f"v_add_u32 v{r}, s28, v{r}")
    gelu_consts(a)
    HF, WF, ACC, T, XS, SA, ONE = 32, 56, 80, 96, 112, 16, 24
    for r in range(16): a(f"v_mov_b32 v{ACC+r}, 0")
    for r in range(8): a(f"v_mov_b32 v{SA+r}, 0")
    for r in range(4): a(f"v_mov_b32 v{ONE+r}, s20")
    def mk_steps(chh):
        steps = []
        for m in range(8):
            hb = HF + 8 * (m % 3); b = WF + 8 * (m % 3)
            rd = [f"ds_read_b64_tr_b16 v[{hb+4*t+2*h}:{hb+4*t+2*h+1}], v{11+t} offset:{(64*m+4*h)*128}" for t in range(2) for h in range(2)]
            rd += [f"ds_read_b64_tr_b16 v[{b+4*c+2*h}:{b+4*c+2*h+1}], v{13+c} offset:{(64*m+4*h)*128}" for c in range(2) for h in range(2)]
            mf = []
            for t in range(2):
                op = ONE if chh == 0 else hb + 4 * t
                mf.append(f"v_mfma_f32_16x16x32_bf16 v[{SA+4*t}:{SA+4*t+3}], v[{op}:{op+3}], v[{hb+4*t}:{hb+4*t+3}], v[{SA+4*t}:{SA+4*t+3}]")
                for c in range(2):
                    mf.append(f"v_mfma_f32_16x16x32_bf16 v[{ACC+8*t+4*c}:{ACC+8*t+4*c+3}], v[{b+4*c}:{b+4*c+3}], v[{hb+4*t}:{hb+4*t+3}], v[{ACC+8*t+4*c}:{ACC+8*t+4*c+3}]")
            steps.append(dict(stage=m // 2, reads=rd, mfmas=mf))
        return steps
    def pre(ch):
        a("s_barrier")
        if ch == 0: stamp(a)
    a("s_cmp_eq_u32 s10, 1\ns_cbranch_scc1 K3_C1")
    pipe_loop(a, mk_steps(0), pre, depth=1)
    a(f"s_nop 7\nv_mov_b32 v{T}, v{SA}\nv_mov_b32 v{T+1}, v{SA+4}\ns_branch K3_C2\nK3_C1:")
    pipe_loop(a, mk_steps(1), lambda ch: a("s_barrier"), depth=1)
    a(f"""
    s_nop 7
    v_and_b32 v1, 3, v9
    v_lshrrev_b32 v3, 2, v9
    v_cmp_eq_u32 s[52:53], v3, v10
    """)
    for t in range(2):
        a(f"""
        v_mov_b32 v{T+t}, v{SA+4*t}
        v_cmp_eq_u32 vcc, 1, v1
        v_cndmask_b32 v{T+t}, v{T+t}, v{SA+4*t+1}, vcc
        v_cmp_eq_u32 vcc, 2, v1
        v_cndmask_b32 v{T+t}, v{T+t}, v{SA+4*t+2}, vcc
        v_cmp_eq_u32 vcc, 3, v1
        v_cndmask_b32 v{T+t}, v{T+t}, v{SA+4*t+3}, vcc
        v_cndmask_b32 v{T+t}, 0, v{T+t}, s[52:53]
        """)
        xor_reduce(a, T + t, T + 2)
    a("K3_C2:")
    stamp(a)
    a(f"""
    ds_read_b64_tr_b16 v[{HF}:{HF+1}], v15
    ds_read_b64_tr_b16 v[{HF+2}:{HF+3}], v15 offset:512
    v_and_b32 v5, 7, v9
    v_lshrrev_b32 v6, 1, v5
    v_and_b32 v5, 1, v5
    v_lshlrev_b32 v6, 10, v6
    v_lshl_add_u32 v6, v5, 8, v6
    v_lshl_add_u32 v6, v10, 4, v6
    s_lshl_b32 s3, s10, 7
    s_add_u32 s3, s3, {MC}
    v_add_u32 v6, s3, v6
    ds_read_b128 v[{CSR}:{CSR+3}], v6
    ds_read_b128 v[{CSR+4}:{CSR+7}], v6 offset:64
    s_lshl_b32 s3, s8, 7
    v_lshlrev_b32 v5, 2, v9
    v_add_u32 v6, s3, v5
    s_lshl_b32 s3, s9, 8
    s_lshl_b32 s12, s11, 6
    s_add_u32 s3, s3, s12
    v_add_u32 v5, s3, v5
    """)
    exchange(a, ACC, XS,
             pre_writes=[f"ds_write_b32 v6, v{T} offset:32768", f"ds_write_b32 v6, v{T+1} offset:{32768+64}"],
             post_reads=[f"ds_read_b32 v{T+2*c+p}, v5 offset:{32768 + 512*p + 128*c}" for c in range(2) for p in range(2)])
    a(f"v_add_f32 v{T}, v{T}, v{T+1}\nv_add_f32 v{T+2}, v{T+2}, v{T+3}")
    M, VAR, MB, DEN, RC = XS, XS + 2, XS + 4, XS + 6, XS + 8
    a(f"""
    v_mul_f32 v{M}, s21, v{T}
    v_mul_f32 v{VAR}, s21, v{T+2}
    v_fma_f32 v{VAR}, -v{M}, v{M}, v{VAR}
    v_max_f32 v{VAR}, 0, v{VAR}
    v_mov_b32 v{DEN}, v{VAR}
    """)
    den_from_var(a, DEN)
    rnd_bf16(a, MB, M)
    a(f"""
    v_rcp_f32 v{RC}, v{DEN}
    v_sub_f32 v{M}, v{M}, v{MB}
    v_mul_f32 v{M}, v{M}, v{RC}
    v_mul_f32 v{VAR}, v{VAR}, v{RC}
    v_mul_f32 v{VAR}, v{VAR}, v{RC}
    """)
    rnd_bf16(a, M, M)
    den_from_var(a, VAR)
    a(f"""
    v_fma_f32 v{M}, v{M}, v{DEN}, v{MB}
    v_sub_f32 v{M}, 0, v{M}
    v_mov_b32 v{M+1}, v{M}
    v_mul_f32 v{VAR}, v{VAR}, v{DEN}
    v_rcp_f32 v{VAR}, v{VAR}
    v_sub_f32 v{MB}, 0, v{MB}
    v_mov_b32 v{MB+1}, v{MB}
    v_mov_b32 v{RC+1}, v{RC}
    v_mov_b32 v{VAR+1}, v{VAR}
    """)
    add64(a, 44, 32, LY.H); add64(a, 46, 32, LY.XB); add64(a, 48, 32, LY.HM)
    OB = 36864
    stage_addrs(a, OB)
    a("v_lshl_add_u32 v8, v10, 3, v5")
    cs_reduce(a, range(CSR, CSR + 8))
    a(f"ds_write_b128 v8, v[{HF}:{HF+3}] offset:9216")
    for c in range(2):
        ln_correct(a, ACC + 4 * c, CSR + 4 * c, M, VAR)
        gelu4(a, ACC + 4 * c, WF + 8 + 8 * c, WF + 2 * c)
        a(f"ds_write_b64 v5, v[{WF+2*c}:{WF+2*c+1}] offset:{32*c}")
    for k in range(4):
        src = HF + k; t = T
        a(f"""
        v_lshlrev_b32 v{t}, 16, v{src}
        v_and_b32 v{t+1}, s23, v{src}
        v_pk_add_f32 v[{t}:{t+1}], v[{t}:{t+1}], v[{MB}:{MB+1}]
        v_cvt_pk_bf16_f32 v{t+2}, v{t}, v{t+1}
        v_lshlrev_b32 v{t}, 16, v{t+2}
        v_and_b32 v{t+1}, s23, v{t+2}
        v_pk_mul_f32 v[{t}:{t+1}], v[{t}:{t+1}], v[{RC}:{RC+1}]
        v_cvt_pk_bf16_f32 v{HF+4+k}, v{t}, v{t+1}
        """)
    a(f"""
    ds_write_b128 v8, v[{HF+4}:{HF+7}] offset:18432
    s_waitcnt lgkmcnt(0)
    s_barrier
    ds_read_b128 v[{HF}:{HF+3}], v6
    ds_read_b128 v[{HF+4}:{HF+7}], v6 offset:9216
    ds_read_b128 v[{HF+8}:{HF+11}], v6 offset:18432
    s_waitcnt lgkmcnt(2)
    global_store_dwordx4 v7, v[{HF}:{HF+3}], s[48:49]
    s_waitcnt lgkmcnt(1)
    global_store_dwordx4 v7, v[{HF+4}:{HF+7}], s[44:45]
    s_waitcnt lgkmcnt(0)
    global_store_dwordx4 v7, v[{HF+8}:{HF+11}], s[46:47]
    """)
    flush_stamps(a, 3)
    a("K3_END:\ns_endpgm")
    kernels.append(("k3_kernel", 256, 768, 131072 + 4096, a.lines, 128, 56))

def gen_k4(kernels):
    a = Asm()
    kstart(a)
    WL, AL = 0, 65536
    a("""
    s_cmp_ge_u32 s2, 256
    s_cbranch_scc1 K4_END
    s_load_dwordx2 s[16:17], s[0:1], 88
    s_load_dwordx2 s[32:33], s[0:1], 128
    """)
    lane_consts(a); tile_map_32x8(a)
    a("s_cmp_ge_u32 s8, 4\ns_cbranch_scc1 K4_C")
    dma_voff128(a, 4, 1024, 5)
    a("""
    s_lshl_b32 s3, s8, 2
    v_add_u32 v1, s3, v10
    v_xor_b32 v1, v9, v1
    v_lshlrev_b32 v3, 10, v10
    v_lshl_add_u32 v3, v1, 4, v3
    s_lshl_b32 s7, s5, 7
    s_lshl_b32 s3, s8, 13
    s_add_u32 s7, s7, s3
    s_lshl_b32 s6, s4, 16
    s_lshl_b32 s3, s8, 12
    s_add_u32 s6, s6, s3
    s_lshl_b32 s15, s8, 10
    s_lshl_b32 s13, s4, 16
    s_lshl_b32 s3, s8, 13
    s_add_u32 s13, s13, s3
    s_lshl_b32 s3, s5, 7
    s_add_u32 s13, s13, s3
    s_waitcnt lgkmcnt(0)
    """)
    tile_voff(a, 6)
    srd(a, 36, 32, LY.HM - 2048, 2052 * 1024)
    srd(a, 40, 16, 0, 512 * 1024)
    srd(a, 44, 32, LY.XB, 2048 * 1024)
    MX = 65536 + 4 * 20480
    def items(kb):
        L = []
        for j in range(5):
            L.append((3, 36, 6, 16384 * j + 256 * kb, AL + 20480 * kb + 4096 * j))
            if j < 4:
                idx = 16 * kb + 4 * j
                L.append((4, 40, 7, idx * 8 * 1024, WL + 1024 * idx))
        if kb == 3:
            for j in range(2): L.append((6, 44, 13, 32768 * j, MX + 4096 * j))
        return L
    loader(a, "K4", 4, 4, items, 8)
    a("K4_C:\ns_sub_u32 s8, s8, 4")
    consts(a); split3(a)
    stamp(a)
    AF, WF, ACC, XR, AB, XS = 32, 56, 80, 96, 100, 108
    a("s_lshl_b32 s14, s10, 2\ns_add_u32 s15, s14, 2\ns_lshl_b32 s28, s11, 12\ns_lshl_b32 s29, s11, 6")
    tr_base128(a, 13, 0, WL, 5, 3, wave_chunk=14)
    tr_base128(a, 14, 0, WL, 5, 3, wave_chunk=15)
    a("v_add_u32 v13, s28, v13\nv_add_u32 v14, s28, v14")
    for kb, sh in enumerate((-1, 1, -2, 2)):
        a(f"""
        s_lshl_b32 s3, s9, 5
        s_add_u32 s3, s3, {2 + sh}
        v_add_u32 v5, s3, v9
        v_and_b32 v3, 15, v5
        v_xor_b32 v3, v10, v3
        v_lshlrev_b32 v3, 4, v3
        v_lshl_add_u32 v{AB+2*kb}, v5, 8, v3
        v_add_u32 v{AB+2*kb}, {AL + 20480*kb}, v{AB+2*kb}
        v_xor_b32 v{AB+2*kb}, s29, v{AB+2*kb}
        v_xor_b32 v{AB+2*kb+1}, 0x80, v{AB+2*kb}
        """)
    for r in range(16): a(f"v_mov_b32 v{ACC+r}, 0")
    steps = []
    for m in range(8):
        b = WF + 8 * (m % 3); af = AF + 8 * (m % 3)
        rd = [f"ds_read_b128 v[{af+4*t}:{af+4*t+3}], v{AB+m} offset:{4096*t}" for t in range(2)]
        rd += [f"ds_read_b64_tr_b16 v[{b+4*c+2*h}:{b+4*c+2*h+1}], v{13+c} offset:{(64*m+4*h)*128}" for c in range(2) for h in range(2)]
        mf = [f"v_mfma_f32_16x16x32_bf16 v[{ACC+8*t+4*c}:{ACC+8*t+4*c+3}], v[{b+4*c}:{b+4*c+3}], v[{af+4*t}:{af+4*t+3}], v[{ACC+8*t+4*c}:{ACC+8*t+4*c+3}]" for t in range(2) for c in range(2)]
        steps.append(dict(stage=m // 2, reads=rd, mfmas=mf))
    def pre(ch):
        a("s_barrier")
        if ch == 0: stamp(a)
    pipe_loop(a, steps, pre, depth=1)
    stamp(a)
    a(f"""
    s_lshl_b32 s3, s9, 5
    s_lshl_b32 s12, s11, 4
    s_add_u32 s12, s3, s12
    v_add_u32 v8, s12, v9
    v_lshlrev_b32 v5, 7, v8
    v_lshl_add_u32 v5, v10, 3, v5
    s_lshl_b32 s3, s10, 6
    s_add_u32 s3, s3, {MX}
    v_add_u32 v5, s3, v5
    ds_read_b64 v[{XR}:{XR+1}], v5
    ds_read_b64 v[{XR+2}:{XR+3}], v5 offset:32
    s_lshl_b32 s3, s4, 13
    s_lshl_b32 s12, s5, 10
    s_add_u32 s3, s3, s12
    s_lshl_b32 s12, s10, 9
    s_add_u32 s3, s3, s12
    v_lshlrev_b32 v8, 3, v8
    v_add_u32 v8, s3, v8
    """)
    exchange(a, ACC, XS)
    add64(a, 48, 32, LY.X1); add64(a, 50, 32, LY.ST4)
    stage_addrs(a, 36864)
    a("v_mov_b32 v24, 0\nv_mov_b32 v25, 0")
    for c in range(2):
        x = ACC + 4 * c
        a(f"""
        v_cvt_pk_bf16_f32 v26, v{x}, v{x+1}
        v_cvt_pk_bf16_f32 v27, v{x+2}, v{x+3}
        v_lshlrev_b32 v{x}, 16, v26
        v_and_b32 v{x+1}, s23, v26
        v_lshlrev_b32 v{x+2}, 16, v27
        v_and_b32 v{x+3}, s23, v27
        v_lshlrev_b32 v26, 16, v{XR+2*c}
        v_and_b32 v27, s23, v{XR+2*c}
        v_lshlrev_b32 v28, 16, v{XR+2*c+1}
        v_and_b32 v29, s23, v{XR+2*c+1}
        v_pk_add_f32 v[{x}:{x+1}], v[{x}:{x+1}], v[26:27]
        v_pk_add_f32 v[{x+2}:{x+3}], v[{x+2}:{x+3}], v[28:29]
        v_cvt_pk_bf16_f32 v{WF+2*c}, v{x}, v{x+1}
        v_cvt_pk_bf16_f32 v{WF+2*c+1}, v{x+2}, v{x+3}
        ds_write_b64 v5, v[{WF+2*c}:{WF+2*c+1}] offset:{32*c}
        """)
        for k in range(2):
            a(f"v_dot2_f32_bf16 v24, v{WF+2*c+k}, s20, v24\nv_dot2_f32_bf16 v25, v{WF+2*c+k}, v{WF+2*c+k}, v25")
    xor_reduce(a, 24, 26); xor_reduce(a, 25, 26)
    a(f"""
    v_cmp_gt_u32 vcc, 16, v2
    s_and_saveexec_b64 s[42:43], vcc
    global_store_dwordx2 v8, v[24:25], s[50:51]
    s_mov_b64 exec, s[42:43]
    s_waitcnt lgkmcnt(0)
    s_barrier
    ds_read_b128 v[{AF}:{AF+3}], v6
    s_waitcnt lgkmcnt(0)
    global_store_dwordx4 v7, v[{AF}:{AF+3}], s[48:49]
    """)
    flush_stamps(a, 4)
    a("K4_END:\ns_endpgm")
    kernels.append(("k4_kernel", 256, 768, 65536 + 4 * 20480 + 8192, a.lines, 128, 56))

def gen_k5(kernels):
    a = Asm()
    kstart(a)
    MS, MC = 131072, 131072 + 16384
    a("""
    s_cmp_ge_u32 s2, 224
    s_cbranch_scc1 K5_END
    s_load_dwordx2 s[16:17], s[0:1], 96
    s_load_dwordx2 s[32:33], s[0:1], 128
    """)
    lane_consts(a)
    a(f"""
    s_and_b32 s4, s2, 7
    s_lshl_b32 s4, s4, 1
    s_lshr_b32 s5, s2, 3
    s_cmp_ge_u32 s5, 14
    s_cselect_b32 s3, 1, 0
    s_add_u32 s4, s4, s3
    s_mul_i32 s3, s3, 14
    s_sub_u32 s5, s5, s3
    s_cmp_ge_u32 s8, 4
    s_cbranch_scc1 K5_C
    s_bfe_u32 s3, s8, 0x10001
    s_lshl_b32 s3, s3, 3
    v_lshlrev_b32 v1, 1, v10
    v_or_b32 v1, s3, v1
    v_xor_b32 v1, v9, v1
    v_mul_u32_u24 v4, 3584, v10
    v_lshl_add_u32 v4, v1, 4, v4
    v_lshrrev_b32 v3, 3, v2
    v_and_b32 v1, 7, v2
    v_xor_b32 v1, v3, v1
    v_lshlrev_b32 v3, 10, v3
    v_lshl_add_u32 v3, v1, 4, v3
    v_lshlrev_b32 v5, 4, v2
    v_lshrrev_b32 v6, 5, v2
    v_mul_u32_u24 v6, 7168, v6
    v_and_b32 v1, 31, v2
    v_lshl_add_u32 v6, v1, 4, v6
    s_lshl_b32 s7, s5, 8
    s_mul_i32 s3, s8, 14336
    s_add_u32 s7, s7, s3
    s_lshl_b32 s6, s4, 17
    s_lshl_b32 s3, s8, 13
    s_add_u32 s6, s6, s3
    s_lshl_b32 s15, s8, 10
    s_lshl_b32 s12, s4, 14
    s_add_u32 s12, s12, s15
    s_add_u32 s12, s12, {LY.ST4}
    s_lshl_b32 s13, s5, 9
    s_mul_i32 s3, s8, 14336
    s_add_u32 s13, s13, s3
    s_add_u32 s13, s13, {LY.CS3}
    s_waitcnt lgkmcnt(0)
    """)
    srd(a, 36, 32, LY.X1, 2048 * 1024)
    srd(a, 40, 16, 0, 512 * 3584)
    srd(a, 44, 32, 0, 0x2000000)
    NST, NBUF, PF = 8, 4, 3
    def items(st):
        buf = 32768 * (st % NBUF); L = []
        for j in range(4):
            L.append((3, 36, 6, 32768 * j + 128 * st, buf + 4096 * j))
            L.append((4, 40, 7, (64 * st + 16 * j) * 3584, buf + 16384 + 4096 * j))
        if st == 1:
            for j in range(4): L.append((5, 44, 12, 4096 * j, MS + 4096 * j))
            L.append((6, 44, 13, 0, MC))
        return L
    loader(a, "K5", NST, PF, items, 9, init=2)
    a("K5_C:\ns_sub_u32 s8, s8, 4")
    consts(a); wave_split(a)
    AFR, ACC, WF, CSR, STR, WB, AB = 32, 48, 80, 112, 128, 144, 152
    T = WF + 16
    stamp(a)
    a(f"""
    s_lshr_b32 s3, s9, 1
    s_lshl_b32 s3, s3, 13
    s_and_b32 s12, s9, 1
    s_lshl_b32 s12, s12, 8
    s_add_u32 s3, s3, s12
    s_add_u32 s3, s3, {MS}
    v_lshlrev_b32 v8, 3, v9
    v_lshl_add_u32 v8, v10, 11, v8
    v_add_u32 v8, s3, v8
    s_lshl_b32 s3, s10, 8
    s_add_u32 s3, s3, {MC}
    v_and_b32 v11, 7, v9
    v_lshlrev_b32 v11, 9, v11
    v_lshl_add_u32 v11, v10, 4, v11
    v_add_u32 v11, s3, v11
    v_lshrrev_b32 v5, 2, v9
    v_lshlrev_b32 v6, 1, v5
    v_and_b32 v1, 1, v10
    v_lshl_or_b32 v6, v1, 3, v6
    v_lshl_add_u32 v5, v10, 3, v5
    v_lshlrev_b32 v5, 8, v5
    v_and_b32 v1, 1, v9
    v_lshl_add_u32 v5, v1, 3, v5
    v_add_u32 v5, 0x4000, v5
    v_bfe_u32 v1, v9, 1, 1
    s_lshl_b32 s3, s10, 3
    v_add_u32 v1, s3, v1
    """)
    for c in range(4):
        a(f"""
        v_add_u32 v{WB+c}, {2*c}, v1
        v_xor_b32 v{WB+c}, v{WB+c}, v6
        v_lshl_add_u32 v{WB+c}, v{WB+c}, 4, v5
        v_add_u32 v{WB+4+c}, 0x10000, v{WB+c}
        """)
    a(f"""
    v_and_b32 v5, 7, v9
    v_xor_b32 v5, v10, v5
    v_lshlrev_b32 v5, 4, v5
    s_lshl_b32 s3, s9, 12
    v_lshl_add_u32 v{AB}, v9, 7, v5
    v_add_u32 v{AB}, s3, v{AB}
    v_xor_b32 v{AB+1}, 64, v{AB}
    v_add_u32 v{AB+2}, 0x10000, v{AB}
    v_add_u32 v{AB+3}, 0x10000, v{AB+1}
    """)
    gelu_consts(a)
    for r in range(32): a(f"v_mov_b32 v{ACC+r}, 0")
    def ln_params(S):
        L = Asm()
        L(f"""
        v_add_f32 v{S}, v{S}, v{S+2}
        v_add_f32 v{S+1}, v{S+1}, v{S+3}
        v_add_f32 v{S+4}, v{S+4}, v{S+6}
        v_add_f32 v{S+5}, v{S+5}, v{S+7}
        v_add_f32 v{S}, v{S}, v{S+4}
        v_add_f32 v{S+1}, v{S+1}, v{S+5}
        """)
        xor_reduce(L, S, S + 2); xor_reduce(L, S + 1, S + 2)
        L(f"""
        v_mul_f32 v{S}, s21, v{S}
        v_mul_f32 v{S+2}, s21, v{S+1}
        v_fma_f32 v{S+2}, -v{S}, v{S}, v{S+2}
        v_max_f32 v{S+2}, 0, v{S+2}
        """)
        den_from_var(L, S + 2)
        rnd_bf16(L, S, S)
        L(f"""
        v_rcp_f32 v{S+2}, v{S+2}
        v_sub_f32 v{S}, 0, v{S}
        v_mov_b32 v{S+1}, v{S}
        v_mov_b32 v{S+3}, v{S+2}
        """)
        return L.lines
    misc_reads = [f"ds_read_b64 v[{STR+8*i+2*p}:{STR+8*i+2*p+1}], v8 offset:{128*i+512*p}" for i in range(2) for p in range(4)]
    misc_reads += [f"ds_read_b128 v[{CSR+4*c}:{CSR+4*c+3}], v11 offset:{64*c}" for c in range(4)]
    Lc = Asm(); cs_reduce(Lc, range(CSR, CSR + 16))
    extras = {5: ln_params(STR), 7: ln_params(STR + 8), 9: Lc.lines[:24], 11: Lc.lines[24:]}
    steps = []
    for st in range(NST):
        buf = st % NBUF; gp = buf >> 1; so = 32768 * (buf & 1)
        for sp in range(2):
            i = 2 * st + sp; b = WF + 16 * (i % 2); af = AFR + 8 * (i % 2)
            rd = [f"ds_read_b128 v[{af+4*t}:{af+4*t+3}], v{AB+2*gp+sp} offset:{so + 2048*t}" for t in range(2)]
            rd += [f"ds_read_b64_tr_b16 v[{b+4*c+2*h}:{b+4*c+2*h+1}], v{WB+4*gp+c} offset:{so + (32*sp+4*h)*256}" for c in range(4) for h in range(2)]
            if i == 3: rd = misc_reads + rd
            mf = [f"v_mfma_f32_16x16x32_bf16 v[{ACC+16*t+4*c}:{ACC+16*t+4*c+3}], v[{b+4*c}:{b+4*c+3}], v[{af+4*t}:{af+4*t+3}], v[{ACC+16*t+4*c}:{ACC+16*t+4*c+3}]" for c in range(4) for t in range(2)]
            steps.append(dict(stage=st, reads=rd, mfmas=mf, extra=extras.get(i, [])))
    def pre(st):
        a("s_barrier")
        if st in (0, 1, 4, 7): stamp(a)
    pipe_loop(a, steps, pre, depth=1)
    stamp(a)
    a(f"""
    s_mul_i32 s3, s8, 4608
    v_mul_u32_u24 v5, 144, v9
    v_lshl_add_u32 v5, v10, 3, v5
    v_add_u32 v5, s3, v5
    v_lshrrev_b32 v6, 3, v2
    v_and_b32 v1, 7, v2
    v_mul_u32_u24 v8, 144, v6
    v_lshl_add_u32 v8, v1, 4, v8
    v_add_u32 v8, s3, v8
    s_lshl_b32 s6, s4, 7
    s_lshl_b32 s7, s9, 5
    s_add_u32 s6, s6, s7
    v_add_u32 v7, s6, v6
    v_mul_u32_u24 v7, 3584, v7
    v_lshl_add_u32 v7, v1, 4, v7
    s_lshl_b32 s7, s5, 8
    s_lshl_b32 s3, s10, 7
    s_add_u32 s7, s7, s3
    v_add_u32 v7, s7, v7
    """)
    add64(a, 48, 32, LY.G)
    for t in range(2):
        for c in range(4):
            x0 = ACC + 16 * t + 4 * c
            ln_correct(a, x0, CSR + 4 * c, STR + 8 * t, STR + 8 * t + 2)
            o = WF + 2 * c
            gelu4(a, x0, T + 8 * (c & 1), o)
            a(f"ds_write_b64 v5, v[{o}:{o+1}] offset:{2304*t + 32*c}")
        a("s_waitcnt lgkmcnt(0)")
        for i in range(2):
            a(f"ds_read_b128 v[{AFR+4*i}:{AFR+4*i+3}], v8 offset:{2304*t + 1152*i}")
        a("s_waitcnt lgkmcnt(0)")
        for i in range(2):
            a(f"global_store_dwordx4 v7, v[{AFR+4*i}:{AFR+4*i+3}], s[48:49]\nv_add_u32 v7, {8*3584}, v7")
    flush_stamps(a, 5)
    a("K5_END:\ns_endpgm")
    kernels.append(("k5_kernel", 224, 768, 131072 + 20480, a.lines, 160, 56))

def gen_k6(kernels):
    a = Asm()
    kstart(a)
    a("""
    s_cmp_ge_u32 s2, 256
    s_cbranch_scc1 K6_END
    s_load_dwordx4 s[16:19], s[0:1], 104
    s_load_dwordx2 s[32:33], s[0:1], 128
    """)
    lane_consts(a); tile_map_32x8(a)
    a("s_cmp_ge_u32 s8, 4\ns_cbranch_scc1 K6_C")
    dma_voff128(a, 4, 1024, 5)
    a(f"""
    s_lshl_b32 s3, s8, 2
    v_add_u32 v1, s3, v10
    v_xor_b32 v1, v9, v1
    v_mul_u32_u24 v3, 3584, v10
    v_lshl_add_u32 v3, v1, 4, v3
    s_lshl_b32 s7, s5, 7
    s_lshl_b32 s3, s8, 13
    s_add_u32 s7, s7, s3
    s_mul_i32 s6, s4, {64*3584}
    s_mul_i32 s3, s8, {4*3584}
    s_add_u32 s6, s6, s3
    s_lshl_b32 s15, s8, 10
    s_lshl_b32 s13, s4, 16
    s_lshl_b32 s3, s8, 13
    s_add_u32 s13, s13, s3
    s_lshl_b32 s3, s5, 7
    s_add_u32 s13, s13, s3
    s_waitcnt lgkmcnt(0)
    """)
    tile_voff(a, 6)
    srd(a, 36, 32, LY.G, 2048 * 3584)
    srd(a, 40, 16, 0, 1792 * 1024)
    srd(a, 44, 32, 0, 0x2000000)
    MX = 131072
    NST, NBUF, PF = 14, 4, 3
    def items(st):
        buf = 32768 * (st % NBUF); L = []
        for j in range(4):
            L.append((3, 36, 6, 16 * 3584 * j + 256 * st, buf + 4096 * j))
            L.append((4, 40, 7, (128 * st + 32 * j) * 1024, buf + 16384 + 4096 * j))
        if st == 6:
            for j in range(2):
                L.append((6, 44, 13, LY.X1 + 32768 * j, MX + 4096 * j))
                L.append((6, 44, 13, LY.H + 32768 * j, MX + 8192 + 4096 * j))
        return L
    loader(a, "K6", NST, PF, items, 10)
    a("K6_C:\ns_sub_u32 s8, s8, 4")
    split3(a)
    stamp(a)
    AF, WF, ACC, XR, AB, XS = 32, 56, 80, 96, 104, 112
    a("s_lshl_b32 s14, s10, 2\ns_add_u32 s15, s14, 2\ns_lshl_b32 s28, s11, 12\ns_lshl_b32 s29, s11, 6")
    tr_base128(a, 12, 0, 16384, 5, 6, wave_chunk=14)
    tr_base128(a, 13, 0, 16384, 5, 6, wave_chunk=15)
    for c in range(2): a(f"v_add_u32 v{12+c}, s28, v{12+c}\nv_add_u32 v{14+c}, 0x10000, v{12+c}\nv_add_u32 v{16+c}, 0x20000, v{12+c}")
    a(f"""
    v_xor_b32 v5, v10, v9
    v_lshlrev_b32 v5, 4, v5
    s_lshl_b32 s3, s9, 13
    v_lshl_add_u32 v{AB}, v9, 8, v5
    v_add_u32 v{AB}, s3, v{AB}
    v_xor_b32 v{AB}, s29, v{AB}
    v_xor_b32 v{AB+1}, 0x80, v{AB}
    """)
    for gp in range(1, 3):
        for q in range(2): a(f"v_add_u32 v{AB+2*gp+q}, {0x10000*gp}, v{AB+q}")
    for r in range(16): a(f"v_mov_b32 v{ACC+r}, 0")
    a("s_mov_b32 s23, 0xffff0000")
    steps = []
    for st in range(NST):
        buf = st % NBUF; gp = buf >> 1; so = 32768 * (buf & 1)
        for q in range(2):
            i = 2 * st + q; b = WF + 8 * (i % 3); af = AF + 8 * (i % 3)
            rd = [f"ds_read_b128 v[{af+4*t}:{af+4*t+3}], v{AB+2*gp+q} offset:{so + 4096*t}" for t in range(2)]
            rd += [f"ds_read_b64_tr_b16 v[{b+4*c+2*h}:{b+4*c+2*h+1}], v{12+2*gp+c} offset:{so + (64*q+4*h)*128}" for c in range(2) for h in range(2)]
            mf = [f"v_mfma_f32_16x16x32_bf16 v[{ACC+8*t+4*c}:{ACC+8*t+4*c+3}], v[{b+4*c}:{b+4*c+3}], v[{af+4*t}:{af+4*t+3}], v[{ACC+8*t+4*c}:{ACC+8*t+4*c+3}]" for t in range(2) for c in range(2)]
            steps.append(dict(stage=st, reads=rd, mfmas=mf))
    def pre(st):
        a("s_barrier")
        if st in (0, 1, 4, 8, 12): stamp(a)
    pipe_loop(a, steps, pre, depth=1)
    stamp(a)
    a(f"""
    s_lshl_b32 s3, s9, 5
    s_lshl_b32 s12, s11, 4
    s_add_u32 s12, s3, s12
    v_add_u32 v8, s12, v9
    v_lshlrev_b32 v5, 7, v8
    v_lshl_add_u32 v5, v10, 3, v5
    s_lshl_b32 s3, s10, 6
    s_add_u32 s3, s3, {MX}
    v_add_u32 v5, s3, v5
    ds_read_b64 v[{XR}:{XR+1}], v5
    ds_read_b64 v[{XR+2}:{XR+3}], v5 offset:32
    ds_read_b64 v[{XR+4}:{XR+5}], v5 offset:8192
    ds_read_b64 v[{XR+6}:{XR+7}], v5 offset:8224
    """)
    exchange(a, ACC, XS)
    stage_addrs(a, 36864)
    for c in range(2):
        x = ACC + 4 * c
        a(f"""
        v_cvt_pk_bf16_f32 v24, v{x}, v{x+1}
        v_cvt_pk_bf16_f32 v25, v{x+2}, v{x+3}
        v_lshlrev_b32 v{x}, 16, v24
        v_and_b32 v{x+1}, s23, v24
        v_lshlrev_b32 v{x+2}, 16, v25
        v_and_b32 v{x+3}, s23, v25
        v_lshlrev_b32 v24, 16, v{XR+2*c}
        v_and_b32 v25, s23, v{XR+2*c}
        v_lshlrev_b32 v26, 16, v{XR+2*c+1}
        v_and_b32 v27, s23, v{XR+2*c+1}
        v_pk_add_f32 v[{x}:{x+1}], v[{x}:{x+1}], v[24:25]
        v_pk_add_f32 v[{x+2}:{x+3}], v[{x+2}:{x+3}], v[26:27]
        v_cvt_pk_bf16_f32 v24, v{x}, v{x+1}
        v_cvt_pk_bf16_f32 v25, v{x+2}, v{x+3}
        v_lshlrev_b32 v{x}, 16, v24
        v_and_b32 v{x+1}, s23, v24
        v_lshlrev_b32 v{x+2}, 16, v25
        v_and_b32 v{x+3}, s23, v25
        v_lshlrev_b32 v24, 16, v{XR+4+2*c}
        v_and_b32 v25, s23, v{XR+4+2*c}
        v_lshlrev_b32 v26, 16, v{XR+4+2*c+1}
        v_and_b32 v27, s23, v{XR+4+2*c+1}
        v_pk_add_f32 v[{x}:{x+1}], v[{x}:{x+1}], v[24:25]
        v_pk_add_f32 v[{x+2}:{x+3}], v[{x+2}:{x+3}], v[26:27]
        v_cvt_pk_bf16_f32 v{WF+2*c}, v{x}, v{x+1}
        v_cvt_pk_bf16_f32 v{WF+2*c+1}, v{x+2}, v{x+3}
        ds_write_b64 v5, v[{WF+2*c}:{WF+2*c+1}] offset:{32*c}
        """)
    a(f"""
    s_waitcnt lgkmcnt(0)
    s_barrier
    ds_read_b128 v[{AF}:{AF+3}], v6
    s_waitcnt lgkmcnt(0)
    global_store_dwordx4 v7, v[{AF}:{AF+3}], s[18:19]
    """)
    flush_stamps(a, 6)
    a("K6_END:\ns_endpgm")
    kernels.append(("k6_kernel", 256, 768, 131072 + 16384, a.lines, 128, 56))

def gen_all(kernels):
    gen_k3(kernels); gen_k4(kernels); gen_k5(kernels); gen_k6(kernels)
```
